```python
import torch

def _softmax(x, axis=-1):
    return torch.softmax(x, dim=axis)
def _gelu(x):
    return torch.nn.functional.gelu(x, approximate="tanh")
def _silu(x):
    return torch.nn.functional.silu(x)
def _sigmoid(x):
    return torch.sigmoid(x)
def _layernorm(x, axis=-1, eps=1e-5):
    m = x.mean(dim=axis, keepdim=True)
    v = x.var(dim=axis, keepdim=True, unbiased=False)
    return (x - m) / torch.sqrt(v + eps)
def _scatter_add(tgt, idx, src, axis=0):
    return tgt.clone().index_add_(axis, idx, src)
def _segment_sum(src, seg, n):
    out = torch.zeros((n,) + src.shape[1:], dtype=src.dtype)
    return out.index_add_(0, seg, src)
def _pad(x, pw):
    flat = tuple(v for pair in reversed(pw) for v in pair)
    return torch.nn.functional.pad(x, flat)

kernel_name = 'parallel_sum__gqa_block_cached__mixer_token_mlp__decode'

def setup_inputs():

    _w = (lambda a: (lambda t: t.to(torch.bfloat16) if t.is_floating_point() else t)(torch.as_tensor(a)))
    def _A_setup():
        B, Sq, D = 4, 1, 512
        Hq, Hkv, Sk, Dh = 32, 32, 8192, 128
        assert Hq % Hkv == 0, (Hq, Hkv)
        return {
            "x": _w((lambda *s: torch.randn(*s, dtype=torch.bfloat16) * 0.05)(B, Sq, D)),
            "k_cache": _w((lambda *s: torch.randn(*s, dtype=torch.bfloat16) * 3.2)(B, Hkv, Sk, Dh)),
            "v_cache": _w((lambda *s: torch.randn(*s, dtype=torch.bfloat16) * 0.8)(B, Hkv, Sk, Dh)),
            "wq": _w((lambda *s: torch.randn(*s, dtype=torch.bfloat16) * 3.2)(D, Hq * Dh) * (D ** -0.5)),
            "wo": _w((lambda *s: torch.randn(*s, dtype=torch.bfloat16) * 0.8)(Hq * Dh, D) * ((Hq * Dh) ** -0.5)),
        }
    _A_in = _A_setup()

    def _B_setup():
        B, S, D, F = 4, 1, 512, 1376
        return {
            "x": _w((lambda *s: torch.randn(*s, dtype=torch.bfloat16) * 0.05)(B, S, D)),
            "w1": _w((lambda *s: torch.randn(*s, dtype=torch.bfloat16) * 1.6)(S, F) * (S ** -0.5)),
            "b1": _w((lambda *s: torch.randn(*s, dtype=torch.bfloat16) * 1.6)(F) * 0.02),
            "w2": _w((lambda *s: torch.randn(*s, dtype=torch.bfloat16) * 1.6)(F, S) * (F ** -0.5)),
            "b2": _w((lambda *s: torch.randn(*s, dtype=torch.bfloat16) * 0.8)(S) * 0.02),
        }
    _B_in = _B_setup()

    return {
        "A_x": _A_in["x"],
        "A_k_cache": _A_in["k_cache"],
        "A_v_cache": _A_in["v_cache"],
        "A_wq": _A_in["wq"],
        "A_wo": _A_in["wo"],
        "B_x": _B_in["x"],
        "B_w1": _B_in["w1"],
        "B_b1": _B_in["b1"],
        "B_w2": _B_in["w2"],
        "B_b2": _B_in["b2"],
    }

def reference(A_x, A_k_cache, A_v_cache, A_wq, A_wo, B_x, B_w1, B_b1, B_w2, B_b2):
    def _A_ref(x, k_cache, v_cache, wq, wo):
        B, Sq, D = x.shape
        Hq, Dh = 32, 128
        Hkv = k_cache.shape[1]
        rep = Hq // Hkv
        q = (lambda x, *d: x.permute(*d))((x @ wq).reshape(B, Sq, Hq, Dh), 0, 2, 1, 3)
        k = (lambda x, n, axis: torch.repeat_interleave(x, n, dim=axis))(k_cache, rep, axis=1)
        v = (lambda x, n, axis: torch.repeat_interleave(x, n, dim=axis))(v_cache, rep, axis=1)
        scores = torch.einsum("bhqd,bhkd->bhqk", q, k) * (Dh ** -0.5)
        p = _softmax(scores, axis=-1)
        o = torch.einsum("bhqk,bhkd->bhqd", p, v)
        return (lambda x, *d: x.permute(*d))(o, 0, 2, 1, 3).reshape(B, Sq, Hq * Dh) @ wo

    def _B_ref(x, w1, b1, w2, b2):
        B, S, D = x.shape
        h = _layernorm(x, axis=-1)
        u = torch.einsum("bsd,sf->bdf", h, w1) + b1
        u = _gelu(u)
        y = torch.einsum("bdf,fs->bds", u, w2) + b2
        return (lambda x, *d: x.permute(*d))(y, 0, 2, 1)

    x = A_x
    xn = _layernorm(x, axis=-1)
    return x + _A_ref(xn, A_k_cache, A_v_cache, A_wq, A_wo) + _B_ref(xn, B_w1, B_b1, B_w2, B_b2)
```

```python
import sys, struct, json

KNAME = "parallel_sum__gqa_block_cached__mixer_token_mlp__decode_kernel"

def f2u(x):
    return struct.unpack("<I", struct.pack("<f", x))[0]
def hx(x):
    return "0x%08x" % (x & 0xffffffff)

LOG2E = 1.4426950408889634
C1 = -2.0 * LOG2E * 0.7978845608028654
C3 = C1 * 0.044715

HEADER = open("parallel_sum__gqa_block_cached__mixer_token_mlp__decode.s.ref").read().split("; Override launch")[0]

def gen(NB=3, kflag="nt", vflag="nt", wflag="", mapping="samexcd", stamps=False, kname=KNAME,
        order="kv_first", sleep=2):
    L = []
    e = L.append
    T = 32
    WAITN = (2 * NB - 1) * 8
    vLane, vKo0, vKo1, vVo0, vVo1, vWq, vWo = 1, 2, 3, 4, 5, 6, 7
    vM = 8; vQ = 12; vP = 20; vR0, vR1 = 24, 25; vT, vF = 26, 27; vPP0, vPP1 = 28, 29
    vL, vChk = 30, 31; vA0, vA1 = 32, 36; vO, vY = 40, 44
    vX = 48; vXo, vXc, vB2 = 52, 53, 54; vXf = 56; vt = 64
    vLdsW, vLdsR, vOut, vPy, vPm, vBa, vBb, vXa, vXb, vZero = 80, 81, 82, 83, 84, 85, 86, 87, 88, 89
    vHa, vHb = 90, 91
    vK = 96
    ACC = vK + 32 * NB
    aV = 0; aW = 32 * NB
    NV = ACC + aW + 128
    sX, sWs = 4, 6
    sWoP, sW1P, sB1P, sW2P, sB2P, sOutP, sDbgP = 8, 12, 14, 16, 18, 20, 22
    rK, rV, rWq, rWo, rW1, rB1, rW2 = 32, 36, 40, 44, 48, 52, 56
    sW, sB, sH, sHs, sKoff, sVoff, sCnt, sTrip = 60, 61, 62, 63, 64, 65, 66, 67
    sMx, sScale, sLog2e, sT0, sT1, sT2, sT3 = 68, 69, 70, 71, 72, 73, 74
    sM1, sR1, sCol, sWoOff, sIss = 75, 76, 77, 78, 79
    sRet = 80
    sC1, sC3, sSpin = 82, 83, 84
    sSt = 86
    def srd(r): return f"s[{r}:{r+3}]"
    def sp(r): return f"s[{r}:{r+1}]"
    def vr(r, n): return f"v[{r}:{r+n-1}]"
    def ar(r, n): return f"a[{r}:{r+n-1}]"
    LDS_Q, LDS_O, LDS_DUMMY, LDS_ML, LDS_QB, LDS_MLP, MLP_STR = 0, 2048, 4096, 8192, 8448, 9472, 3328
    LDS_SIZE = LDS_MLP + 3 * MLP_STR
    WS_ML = 512 * 1024
    DPPALL = "row_mask:0xf bank_mask:0xf"
    nstamp = [0]
    def stamp():
        if stamps:
            e(f" s_memrealtime s[{sSt+2*nstamp[0]}:{sSt+2*nstamp[0]+1}]")
            nstamp[0] += 1

    def issueK(beta):
        out = []
        for g in range(4):
            for i in range(2):
                r = vK + beta * 32 + (g * 2 + i) * 4
                vo = vKo1 if g >= 2 else vKo0
                out.append(f" buffer_load_dwordx4 {vr(r,4)}, v{vo}, {srd(rK)}, s{sKoff} offen offset:{(g&1)*1024+i*128} {kflag}")
        return out
    def issueV(beta):
        out = []
        for n in range(8):
            r = aV + beta * 32 + n * 4
            vo = vVo1 if n >= 4 else vVo0
            out.append(f" buffer_load_dwordx4 {ar(r,4)}, v{vo}, {srd(rV)}, s{sVoff} offen offset:{(n&3)*1024} {vflag}")
        return out
    def wave_reduce(op, regs, first=True):
        steps = ["quad_perm:[1,0,3,2] " + DPPALL, "quad_perm:[2,3,0,1] " + DPPALL] if first else []
        steps += ["row_half_mirror " + DPPALL, "row_mirror " + DPPALL,
                  "row_bcast:15 row_mask:0xa bank_mask:0xf", "row_bcast:31 row_mask:0xc bank_mask:0xf"]
        for st in steps:
            e(f" s_nop {1 if len(regs) == 1 else 0}")
            for r in regs:
                e(f" {op}_dpp v{r}, v{r}, v{r} {st}")
    def rnd2(a, b, t):
        e(f" v_cvt_pk_bf16_f32 v{t}, v{a}, v{b}")
        e(f" v_lshlrev_b32 v{a}, 16, v{t}")
        e(f" v_and_b32 v{b}, 0xffff0000, v{t}")
    def ln_stats(sm, sr):
        e(f" v_add_f32 v{vt}, v{vXf}, v{vXf+1}")
        e(f" v_add_f32 v{vt+1}, v{vXf+2}, v{vXf+3}")
        e(f" v_add_f32 v{vt+2}, v{vXf+4}, v{vXf+5}")
        e(f" v_add_f32 v{vt+3}, v{vXf+6}, v{vXf+7}")
        e(f" v_add_f32 v{vt}, v{vt}, v{vt+1}")
        e(f" v_add_f32 v{vt+2}, v{vt+2}, v{vt+3}")
        e(f" v_add_f32 v{vt}, v{vt}, v{vt+2}")
        wave_reduce("v_add_f32", [vt])
        e(f" v_mul_f32 v{vt}, {hx(f2u(1/512))}, v{vt}")
        e(" s_nop 0")
        e(f" v_readlane_b32 s{sT0}, v{vt}, 63")
        e(f" v_cvt_pk_bf16_f32 v{vt+9}, v{vt}, v{vt}")
        e(f" v_and_b32 v{vt+9}, 0xffff0000, v{vt+9}")
        for j in range(8):
            e(f" v_subrev_f32 v{vt+1+j}, s{sT0}, v{vXf+j}")
        e(f" v_readlane_b32 s{sm}, v{vt+9}, 63")
        e(f" v_mul_f32 v{vt}, v{vt+1}, v{vt+1}")
        for j in range(1, 8):
            e(f" v_fmac_f32 v{vt}, v{vt+1+j}, v{vt+1+j}")
        wave_reduce("v_add_f32", [vt])
        e(f" v_mul_f32 v{vt}, {hx(f2u(1/512))}, v{vt}")
        e(f" v_cvt_pk_bf16_f32 v{vt}, v{vt}, v{vt}")
        e(f" v_and_b32 v{vt}, 0xffff0000, v{vt}")
        e(f" v_add_f32 v{vt}, {hx(f2u(1e-5))}, v{vt}")
        e(f" v_cvt_pk_bf16_f32 v{vt}, v{vt}, v{vt}")
        e(f" v_and_b32 v{vt}, 0xffff0000, v{vt}")
        e(f" v_sqrt_f32 v{vt}, v{vt}")
        e(" s_nop 0")
        e(f" v_cvt_pk_bf16_f32 v{vt}, v{vt}, v{vt}")
        e(f" v_and_b32 v{vt}, 0xffff0000, v{vt}")
        e(f" v_rcp_f32 v{vt}, v{vt}")
        e(" s_nop 1")
        e(f" v_readlane_b32 s{sr}, v{vt}, 63")
        e(" s_nop 1")
    def ln_apply(a, b, sm, sr, t):
        e(f" v_subrev_f32 v{a}, s{sm}, v{a}")
        e(f" v_subrev_f32 v{b}, s{sm}, v{b}")
        rnd2(a, b, t)
        e(f" v_mul_f32 v{a}, s{sr}, v{a}")
        e(f" v_mul_f32 v{b}, s{sr}, v{b}")
        rnd2(a, b, t)

    e(HEADER.rstrip())
    e(f"; @launch grid=(256,1,1) block=(256,1,1) lds={LDS_SIZE}")
    e('.amdgcn_target "amdgcn-amd-amdhsa--gfx950"')
    e(f".text\n.globl {kname}\n.p2align 8\n.type {kname},@function\n{kname}:")
    e(" s_cmp_ge_u32 s2, 256\n s_cbranch_scc1 L_end")
    stamp()
    e(f" s_load_dwordx2 {sp(rK)}, s[0:1], 8")
    e(f" s_load_dwordx2 {sp(rV)}, s[0:1], 16")
    e(f" s_load_dwordx2 {sp(rWq)}, s[0:1], 24")
    e(f" s_load_dwordx2 {sp(sX)}, s[0:1], 0")
    e(f" s_load_dwordx16 s[8:23], s[0:1], 32")
    e(f" s_load_dwordx2 {sp(sWs)}, s[0:1], 96")
    e(f" v_lshrrev_b32 v{vt}, 6, v0")
    e(f" v_and_b32 v{vLane}, 63, v0")
    e(f" v_readfirstlane_b32 s{sW}, v{vt}")
    e(f" s_and_b32 s{sT0}, s2, 7")
    e(f" s_lshr_b32 s{sT1}, s2, 3")
    if mapping == "samexcd":
        e(f" s_lshr_b32 s{sH}, s{sT1}, 3")
        e(f" s_lshl2_add_u32 s{sH}, s{sT0}, s{sH}")
        e(f" s_bfe_u32 s{sB}, s{sT1}, 0x20001")
        e(f" s_and_b32 s{sT2}, s{sT1}, 1")
    elif mapping == "pairxcd":
        e(f" s_lshr_b32 s{sH}, s{sT1}, 2")
        e(f" s_lshr_b32 s{sT2}, s{sT0}, 1")
        e(f" s_lshl3_add_u32 s{sH}, s{sT2}, s{sH}")
        e(f" s_and_b32 s{sB}, s{sT1}, 3")
        e(f" s_and_b32 s{sT2}, s{sT0}, 1")
    e(f" s_lshl1_add_u32 s{sHs}, s{sH}, s{sT2}")
    e(f" s_lshl_b32 s{sT0}, s{sB}, 6")
    e(f" s_add_u32 s{sT3}, s{sT0}, s{sHs}")
    e(f" s_lshl_b32 s{sKoff}, s{sT3}, 20")
    e(f" s_lshl_b32 s{sT0}, s{sW}, 13")
    e(f" s_add_u32 s{sKoff}, s{sKoff}, s{sT0}")
    e(f" s_mov_b32 s{sVoff}, s{sKoff}")
    for r, n in ((rK, 0x10000000), (rV, 0x10000000), (rWq, 0x400000), (rWo, 0x400000), (rW1, 2752), (rB1, 2752), (rW2, 2752)):
        e(f" s_mov_b32 s{r+2}, {hx(n)}\n s_mov_b32 s{r+3}, 0x00020000")
    e(f" v_lshlrev_b32 v{vVo0}, 4, v{vLane}")
    e(f" v_add_u32 v{vVo1}, 4096, v{vVo0}")
    e(f" v_and_b32 v{vKo0}, 0x70, v{vVo0}")
    e(f" v_and_b32 v{vt}, 0x300, v{vVo0}                ; (l>>4)*256")
    e(f" v_or_b32 v{vKo0}, v{vKo0}, v{vt}")
    e(f" v_and_b32 v{vt+1}, 8, v{vLane}")
    e(f" v_lshl_or_b32 v{vKo0}, v{vt+1}, 8, v{vKo0}")
    e(f" v_add_u32 v{vKo1}, 4096, v{vKo0}")
    e(f" v_and_b32 v{vt+2}, 0xf0, v{vVo0}               ; c*16")
    e(f" v_lshl_or_b32 v{vWq}, v{vt}, 10, v{vt+2}        ; (l>>4)*262144 + c*16")
    e(f" v_lshl_or_b32 v{vWo}, v{vt}, 7, v{vt+2}         ; (l>>4)*32768 + c*16")
    e(f" s_lshl_b32 s{sT0}, s{sT3}, 11")
    e(f" s_lshl_b32 s{sT1}, s{sW}, 9")
    e(f" s_add_u32 s{sT0}, s{sT0}, s{sT1}")
    e(f" v_add_u32 v{vOut}, s{sT0}, v{vVo0}")
    e(f" s_lshl_b32 s{sT0}, s{sT3}, 3")
    e(f" s_add_u32 s{sT0}, s{sT0}, {WS_ML}")
    e(f" v_mov_b32 v{vt+8}, s{sT0}")
    for j in range(4):
        e(f" v_mov_b32 v{vt+4+j}, -1")
    e(f" s_lshl_b32 s{sT0}, s{sHs}, 3")
    e(f" s_lshl1_add_u32 s{sT0}, s{sW}, s{sT0}          ; f")
    e(f" s_and_b32 s{sCol}, s{sT0}, 0x183")
    e(f" s_bfe_u32 s{sT1}, s{sT0}, 0x40002")
    e(f" s_lshl3_add_u32 s{sCol}, s{sT1}, s{sCol}")
    e(f" s_bfe_u32 s{sT1}, s{sT0}, 0x10006")
    e(f" s_lshl2_add_u32 s{sCol}, s{sT1}, s{sCol}")
    e(f" s_lshl_b32 s{sT1}, s{sB}, 9")
    e(f" s_add_u32 s{sCol}, s{sCol}, s{sT1}")
    e(f" s_lshl_b32 s{sCol}, s{sCol}, 1")
    e(f" s_lshl_b32 s{sT1}, s{sB}, 17")
    e(f" s_lshl2_add_u32 s{sT1}, s{sT0}, s{sT1}")
    e(f" v_lshlrev_b32 v{vPy}, 11, v{vLane}")
    e(f" v_add_u32 v{vPy}, s{sT1}, v{vPy}")
    e(f" s_lshl_b32 s{sT1}, s{sB}, 9")
    e(f" s_add_u32 s{sT1}, s{sT1}, {WS_ML}")
    e(f" v_lshlrev_b32 v{vPm}, 3, v{vLane}")
    e(f" v_add_u32 v{vPm}, s{sT1}, v{vPm}")
    e(f" s_lshl_b32 s{sT1}, s{sB}, 10")
    e(f" v_add_u32 v{vt}, s{sT1}, v{vVo0}")
    e(f" v_lshlrev_b32 v{vt+1}, 2, v0")
    e(f" v_add_u32 v{vt+1}, s{sT1}, v{vt+1}")
    e(f" v_mov_b32 v{vt+2}, s{sCol}")
    e(f" v_mov_b32 v{vZero}, 0")
    e(f" s_mul_i32 s{sT2}, s{sW}, 688")
    e(f" v_add_u32 v{vt+3}, s{sT2}, v{vVo0}")
    e(" s_waitcnt lgkmcnt(0)")
    e(f" global_load_dwordx4 {vr(vX,4)}, v{vt}, {sp(sX)}")
    e(f" global_load_dword v{vXo}, v{vt+1}, {sp(sX)}")
    def adv(s):
        e(f" s_add_u32 s{s}, s{s}, 32768")
    def pro_kv(beta, lim=True):
        for x in issueK(beta): e(x)
        adv(sKoff)
        for x in issueV(beta): e(x)
        adv(sVoff)
    def pro_small():
        e(f" global_load_dword v{vXc}, v{vt+2}, {sp(sX)}")
        e(f" global_load_ushort v{vB2}, v{vZero}, {sp(sB2P)}")
        e(" s_mov_b32 exec_hi, 0")
        e(f" global_store_dwordx4 v{vOut}, {vr(vt+4,4)}, {sp(sWs)} sc1")
        e(f" s_mov_b64 exec, 1")
        e(f" global_store_dwordx2 v{vt+8}, {vr(vt+4,2)}, {sp(sWs)} sc1")
        e(f" s_mov_b64 exec, -1")
        for r, p in ((rWo, sWoP), (rW1, sW1P), (rB1, sB1P), (rW2, sW2P)):
            e(f" s_mov_b32 s{r}, s{p}\n s_mov_b32 s{r+1}, s{p+1}")
        for a, r in enumerate((rW1, rB1, rW2)):
            e(f" s_add_u32 m0, s{sT2}, {LDS_MLP + a*MLP_STR}")
            e(" s_nop 0")
            e(f" buffer_load_dwordx4 v{vt+3}, {srd(r)}, 0 offen lds")
    def pro_wq():
        e(f" s_lshl_b32 s{sT0}, s{sW}, 20")
        e(f" s_lshl_b32 s{sT1}, s{sH}, 8")
        e(f" s_add_u32 s{sT0}, s{sT0}, s{sT1}")
        for i in range(32):
            e(f" buffer_load_dwordx4 {ar(aW+4*i,4)}, v{vWq}, {srd(rWq)}, s{sT0} offen {wflag}")
            if i < 31: e(f" s_add_u32 s{sT0}, s{sT0}, 8192")
    if order == "kv_first":
        pro_kv(0); pro_small(); pro_wq()
        nafter_x = 55
        first_rest = 1
    else:
        pro_wq(); pro_kv(0); pro_small()
        nafter_x = 55
        first_rest = 1
    e(f" s_mov_b32 s{sScale}, {hx(f2u(128 ** -0.5))}")
    e(f" s_mov_b32 s{sLog2e}, {hx(f2u(LOG2E))}")
    e(f" s_mov_b32 s{sMx}, 0xff800000")
    e(f" s_lshl_b32 s{sWoOff}, s{sH}, 17")
    e(f" s_lshl_b32 s{sT0}, s{sW}, 8")
    e(f" s_add_u32 s{sWoOff}, s{sWoOff}, s{sT0}")
    e(f" v_and_b32 v{vt}, 15, v{vLane}")
    e(f" v_and_b32 v{vt+1}, 1, v{vLane}")
    e(f" v_lshlrev_b32 v{vt+1}, 4, v{vt+1}")
    e(f" v_mov_b32 v{vt+2}, 0xffff")
    e(f" v_lshlrev_b32 v{vt+2}, v{vt+1}, v{vt+2}")
    e(f" v_lshrrev_b32 v{vt+3}, 1, v{vt}")
    for r in range(4):
        e(f" v_cmp_eq_u32 vcc, {r}, v{vt+3}")
        e(" s_nop 1")
        e(f" v_cndmask_b32 v{vM+r}, 0, v{vt+2}, vcc")
    e(f" v_lshlrev_b32 v{vLdsW}, 5, v{vt}")
    e(f" v_and_b32 v{vt+1}, 16, v{vLane}")
    e(f" v_or_b32 v{vLdsW}, v{vLdsW}, v{vt+1}")
    e(f" v_and_b32 v{vt+1}, 32, v{vLane}")
    e(f" v_lshl_or_b32 v{vLdsW}, v{vt+1}, 7, v{vLdsW}")
    e(f" s_lshl_b32 s{sT0}, s{sW}, 9")
    e(f" v_add_u32 v{vLdsW}, s{sT0}, v{vLdsW}")
    e(f" v_lshlrev_b32 v{vLdsR}, 3, v{vLane}")
    for j in range(4):
        e(f" v_mov_b32 v{vO+j}, 0")
    e(f" v_mov_b32 v{vL}, 0")
    e(f" s_waitcnt vmcnt({nafter_x})")
    for j in range(4):
        e(f" v_lshlrev_b32 v{vXf+2*j}, 16, v{vX+j}")
        e(f" v_and_b32 v{vXf+2*j+1}, 0xffff0000, v{vX+j}")
    ln_stats(sM1, sR1)
    e(f" v_lshlrev_b32 v{vPP0}, 16, v{vXo}")
    e(f" v_and_b32 v{vPP1}, 0xffff0000, v{vXo}")
    ln_apply(vPP0, vPP1, sM1, sR1, vT)
    e(f" v_cvt_pk_bf16_f32 v{vPP0}, v{vPP0}, v{vPP0}")
    e(f" v_cvt_pk_bf16_f32 v{vPP1}, v{vPP1}, v{vPP1}")
    stamp()
    nrest = 0
    for beta in range(first_rest, NB):
        e(" s_waitcnt vmcnt(55)")
        for x in issueK(beta): e(x)
        adv(sKoff)
        e(" s_waitcnt vmcnt(55)")
        for x in issueV(beta): e(x)
        adv(sVoff)
        nrest += 16
    e(f" s_waitcnt vmcnt({nrest})")
    stamp()
    e(f" s_call_b64 {sp(sRet)}, L_gemv")
    e(f" ds_write_b128 v{vLdsW}, {vr(vY,4)} offset:{LDS_Q}")
    e(" s_waitcnt lgkmcnt(0)")
    e(" s_barrier")
    for w in range(4):
        e(f" ds_read_b64 {vr(vt+2*w,2)}, v{vLdsR} offset:{LDS_Q + 512*w}")
    e(f" s_cmp_lg_u32 s{sW}, 0")
    e(" s_cbranch_scc1 L_nosig")
    e(f" s_lshl_b32 s{sT0}, s{sB}, 6")
    e(f" v_mov_b32 v{vt+10}, s{sT0}")
    e(f" v_mov_b32 v{vt+11}, 1")
    e(" s_mov_b64 exec, 1")
    e(f" global_atomic_add v{vt+10}, v{vt+11}, {sp(sDbgP)} sc1")
    e(" s_mov_b64 exec, -1")
    e("L_nosig:")
    e(f" s_lshl_b32 s{sT0}, s{sW}, 8")
    e(f" v_lshl_add_u32 v{vt+8}, v{vLane}, 2, s{sT0}")
    e(f" v_and_b32 v{vt+9}, 0x70, v{vVo0}")
    e(f" v_add_u32 v{vt+9}, s{sT0}, v{vt+9}")
    e(" s_waitcnt lgkmcnt(0)")
    e(f" v_add_f32 v{vt}, v{vt}, v{vt+2}")
    e(f" v_add_f32 v{vt+1}, v{vt+1}, v{vt+3}")
    e(f" v_add_f32 v{vt+4}, v{vt+4}, v{vt+6}")
    e(f" v_add_f32 v{vt+5}, v{vt+5}, v{vt+7}")
    e(f" v_add_f32 v{vt}, v{vt}, v{vt+4}")
    e(f" v_add_f32 v{vt+1}, v{vt+1}, v{vt+5}")
    e(f" v_cvt_pk_bf16_f32 v{vt}, v{vt}, v{vt+1}")
    e(f" ds_write_b32 v{vt+8}, v{vt} offset:{LDS_QB}")
    e(" s_waitcnt lgkmcnt(0)")
    e(f" ds_read_b128 {vr(vQ,4)}, v{vt+9} offset:{LDS_QB}")
    e(f" ds_read_b128 {vr(vQ+4,4)}, v{vt+9} offset:{LDS_QB+128}")
    e(f" s_mov_b32 s{sCnt}, {T}")
    e(f" s_mov_b32 s{sTrip}, 0")
    e(" s_waitcnt lgkmcnt(0)")
    stamp()
    e(".p2align 6")
    e("L_loop:")
    for beta in range(NB):
        kb = vK + beta * 32
        e(f" s_cmp_le_u32 s{sCnt}, {NB}")
        e(f" s_cselect_b32 s{rK+2}, 0, s{rK+2}")
        e(f" s_cselect_b32 s{rV+2}, 0, s{rV+2}")
        e(f" s_waitcnt vmcnt({WAITN})")
        for i in range(2):
            for r in range(4):
                for g in range(4):
                    c = "0" if (i == 0 and r == 0) else f"v{vP+g}"
                    e(f" v_dot2_f32_bf16 v{vP+g}, v{kb+(g*2+i)*4+r}, v{vQ+i*4+r}, {c}")
        kl = issueK(beta)
        e(kl[0]); e(kl[1]); e(kl[2])
        e(f" v_add_f32_dpp v{vR0}, v{vP}, v{vP} row_half_mirror row_mask:0xf bank_mask:0x5")
        e(f" v_add_f32_dpp v{vR1}, v{vP+2}, v{vP+2} row_half_mirror row_mask:0xf bank_mask:0x5")
        e(kl[3])
        e(f" v_add_f32_dpp v{vR0}, v{vP+1}, v{vP+1} row_half_mirror row_mask:0xf bank_mask:0xa")
        e(f" v_add_f32_dpp v{vR1}, v{vP+3}, v{vP+3} row_half_mirror row_mask:0xf bank_mask:0xa")
        e(kl[4])
        e(f" v_add_f32_dpp v{vR0}, v{vR0}, v{vR0} quad_perm:[1,0,3,2] {DPPALL}")
        e(f" v_add_f32_dpp v{vR1}, v{vR1}, v{vR1} quad_perm:[1,0,3,2] {DPPALL}")
        e(kl[5])
        e(f" v_add_f32_dpp v{vR0}, v{vR0}, v{vR0} quad_perm:[2,3,0,1] {DPPALL}")
        e(f" v_add_f32_dpp v{vR1}, v{vR1}, v{vR1} quad_perm:[2,3,0,1] {DPPALL}")
        e(kl[6]); e(kl[7])
        adv(sKoff)
        rnd2(vR0, vR1, vT)
        e(f" v_mul_f32 v{vR0}, s{sScale}, v{vR0}")
        e(f" v_mul_f32 v{vR1}, s{sScale}, v{vR1}")
        rnd2(vR0, vR1, vT)
        e(f" v_max_f32 v{vT}, v{vR0}, v{vR1}")
        e(f" v_cmp_lt_f32 vcc, s{sMx}, v{vT}")
        e(f" s_cbranch_vccz L_keep{beta}")
        wave_reduce("v_max_f32", [vT], first=False)
        e(f" v_mov_b32 v{vF}, s{sMx}")
        e(f" v_readlane_b32 s{sMx}, v{vT}, 63")
        e(" s_nop 1")
        e(f" v_subrev_f32 v{vF}, s{sMx}, v{vF}")
        e(f" v_mul_f32 v{vF}, s{sLog2e}, v{vF}")
        e(f" v_exp_f32 v{vF}, v{vF}")
        e(" s_nop 0")
        for j in range(4):
            e(f" v_mul_f32 v{vO+j}, v{vF}, v{vO+j}")
        e(f" v_mul_f32 v{vL}, v{vF}, v{vL}")
        e(f"L_keep{beta}:")
        e(f" v_subrev_f32 v{vR0}, s{sMx}, v{vR0}")
        e(f" v_subrev_f32 v{vR1}, s{sMx}, v{vR1}")
        e(f" v_mul_f32 v{vR0}, s{sLog2e}, v{vR0}")
        e(f" v_mul_f32 v{vR1}, s{sLog2e}, v{vR1}")
        e(f" v_exp_f32 v{vR0}, v{vR0}")
        e(f" v_exp_f32 v{vR1}, v{vR1}")
        e(f" s_nop 0")
        e(f" v_cvt_pk_bf16_f32 v{vPP0}, v{vR0}, v{vR0}")
        e(f" v_cvt_pk_bf16_f32 v{vPP1}, v{vR1}, v{vR1}")
        e(f" v_add_f32 v{vL}, v{vL}, v{vR0}")
        e(f" v_add_f32 v{vL}, v{vL}, v{vR1}")
        def mkA(n):
            a = vA0 if n % 2 == 0 else vA1
            src = vPP0 if n < 4 else vPP1
            for r in range(4):
                e(f" v_and_b32_dpp v{a+r}, v{src}, v{vM+r} row_newbcast:{4*(n&3)} {DPPALL}")
        mkA(0); mkA(1)
        e(f" s_waitcnt vmcnt({WAITN})")
        vl = issueV(beta)
        for n in range(8):
            a = vA0 if n % 2 == 0 else vA1
            e(f" v_mfma_f32_16x16x32_bf16 {vr(vO,4)}, {vr(a,4)}, {ar(aV+beta*32+n*4,4)}, {vr(vO,4)}")
            if n + 2 < 8: mkA(n + 2)
            elif n == 6: e(" s_nop 0")
        e(f" s_sub_u32 s{sCnt}, s{sCnt}, 1")
        e(f" s_cmp_eq_u32 s{sCnt}, 0")
        e(" s_cbranch_scc1 L_tail")
        for x in vl: e(x)
        adv(sVoff)
    e(f" s_add_u32 s{sTrip}, s{sTrip}, 1")
    ntrips = (T - 1) // NB
    assert ntrips >= 10
    for n in range(1, 11):
        e(f" s_cmp_eq_u32 s{sTrip}, {n}\n s_cbranch_scc1 L_x{n}")
    e(" s_branch L_loop")
    for n in range(1, 9):
        e(f"L_x{n}:")
        for i in range(4):
            e(f" buffer_load_dwordx4 {ar(aW+4*(4*(n-1)+i),4)}, v{vWo}, {srd(rWo)}, s{sWoOff} offen offset:{1024*i} {wflag}")
        e(f" s_add_u32 s{sWoOff}, s{sWoOff}, 4096")
        if n == 1:
            e("; ---- second LayerNorm and the token-mixing MLP for this wave's two columns")
            for j in range(4):
                ln_apply(vXf + 2*j, vXf + 2*j + 1, sM1, sR1, vT)
            e(f" v_lshlrev_b32 v{vXa}, 16, v{vXc}")
            e(f" v_and_b32 v{vXb}, 0xffff0000, v{vXc}")
            e(f" v_mov_b32 v{vHa}, v{vXa}")
            e(f" v_mov_b32 v{vHb}, v{vXb}")
            ln_apply(vHa, vHb, sM1, sR1, vT)
            ln_stats(sT2, sT3)
            ln_apply(vHa, vHb, sT2, sT3, vT)
            e(f" s_mov_b32 s{sC1}, {hx(f2u(C1))}")
            e(f" s_mov_b32 s{sC3}, {hx(f2u(C3))}")
            e(f" v_mov_b32 v{vXf+7}, s{sC1}")
            e(f" v_mov_b32 v{vBa}, 0")
            e(f" v_mov_b32 v{vBb}, 0")
            e(f" v_lshlrev_b32 v{vXf}, 2, v{vLane}")
            e(f" s_mov_b32 s{sT0}, 11")
            e("L_mlp:")
            e(f" ds_read_b32 v{vXf+1}, v{vXf} offset:{LDS_MLP}")
            e(f" ds_read_b32 v{vXf+3}, v{vXf} offset:{LDS_MLP+MLP_STR}")
            e(f" ds_read_b32 v{vXf+5}, v{vXf} offset:{LDS_MLP+2*MLP_STR}")
            e(f" v_add_u32 v{vXf}, 256, v{vXf}")
            e(" s_waitcnt lgkmcnt(0)")
            e(f" v_and_b32 v{vXf+2}, 0xffff0000, v{vXf+1}")
            e(f" v_lshlrev_b32 v{vXf+1}, 16, v{vXf+1}")
            e(f" v_and_b32 v{vXf+4}, 0xffff0000, v{vXf+3}")
            e(f" v_lshlrev_b32 v{vXf+3}, 16, v{vXf+3}")
            u = [vt, vt+1, vt+2, vt+3]; z = [vt+4, vt+5, vt+6, vt+7]
            hs = [vHa, vHa, vHb, vHb]
            for k in range(4): e(f" v_mul_f32 v{u[k]}, v{hs[k]}, v{vXf+1+(k&1)}")
            rnd2(u[0], u[1], vt+8); rnd2(u[2], u[3], vt+9)
            for k in range(4): e(f" v_add_f32 v{u[k]}, v{u[k]}, v{vXf+3+(k&1)}")
            rnd2(u[0], u[1], vt+8); rnd2(u[2], u[3], vt+9)
            for k in range(4): e(f" v_mul_f32 v{z[k]}, v{u[k]}, v{u[k]}")
            for k in range(4): e(f" v_fma_f32 v{z[k]}, v{z[k]}, s{sC3}, v{vXf+7}")
            for k in range(4): e(f" v_mul_f32 v{z[k]}, v{z[k]}, v{u[k]}")
            for k in range(4): e(f" v_exp_f32 v{z[k]}, v{z[k]}")
            e(" s_nop 0")
            for k in range(4): e(f" v_add_f32 v{z[k]}, 1.0, v{z[k]}")
            for k in range(4): e(f" v_rcp_f32 v{z[k]}, v{z[k]}")
            e(" s_nop 0")
            for k in range(4): e(f" v_mul_f32 v{u[k]}, v{u[k]}, v{z[k]}")
            e(f" v_cvt_pk_bf16_f32 v{vt+8}, v{u[0]}, v{u[1]}")
            e(f" v_cvt_pk_bf16_f32 v{vt+9}, v{u[2]}, v{u[3]}")
            e(f" v_dot2_f32_bf16 v{vBa}, v{vt+8}, v{vXf+5}, v{vBa}")
            e(f" v_dot2_f32_bf16 v{vBb}, v{vt+9}, v{vXf+5}, v{vBb}")
            e(f" s_sub_u32 s{sT0}, s{sT0}, 1")
            e(f" s_cmp_lg_u32 s{sT0}, 0")
            e(" s_cbranch_scc1 L_mlp")
            e(" s_nop 1")
            wave_reduce("v_add_f32", [vBa, vBb])
            rnd2(vBa, vBb, vT)
            e(f" v_lshlrev_b32 v{vB2}, 16, v{vB2}")
            e(f" v_add_f32 v{vBa}, v{vBa}, v{vB2}")
            e(f" v_add_f32 v{vBb}, v{vBb}, v{vB2}")
            rnd2(vBa, vBb, vT)
        e(" s_branch L_loop")
    e("L_x9:")
    e(f" s_lshl_b32 s{sT0}, s{sB}, 6")
    e(f" v_mov_b32 v{vt}, s{sT0}")
    e(f" global_load_dword v{vChk}, v{vt}, {sp(sDbgP)} sc1")
    e(" s_branch L_loop")
    e("L_x10:")
    e(f" s_mov_b32 s{sSpin}, 0x40000")
    e("L_chk:")
    e(f" v_readfirstlane_b32 s{sT0}, v{vChk}")
    e(f" s_cmp_ge_u32 s{sT0}, 64")
    e(" s_cbranch_scc1 L_loop")
    e(f" s_sub_u32 s{sSpin}, s{sSpin}, 1")
    e(f" s_cmp_eq_u32 s{sSpin}, 0")
    e(" s_cbranch_scc1 L_loop")
    e(f" s_lshl_b32 s{sT0}, s{sB}, 6")
    e(f" v_mov_b32 v{vt}, s{sT0}")
    e(f" global_load_dword v{vChk}, v{vt}, {sp(sDbgP)} sc1")
    e(" s_waitcnt vmcnt(0)")
    e(" s_branch L_chk")

    e("L_gemv:")
    def mkG(i):
        a = vA0 if i % 2 == 0 else vA1
        src = vPP0 if i % 2 == 0 else vPP1
        for r in range(4):
            e(f" v_and_b32_dpp v{a+r}, v{src}, v{vM+r} row_newbcast:{i>>1} {DPPALL}")
    e(" s_nop 0")
    mkG(0); mkG(1)
    for i in range(32):
        a = vA0 if i % 2 == 0 else vA1
        c = "0" if i == 0 else vr(vY, 4)
        e(f" v_mfma_f32_16x16x32_bf16 {vr(vY,4)}, {vr(a,4)}, {ar(aW+4*i,4)}, {c}")
        if i + 2 < 32: mkG(i + 2)
        elif i == 30: e(" s_nop 0")
    e(" s_nop 7")
    e(f" s_setpc_b64 {sp(sRet)}")

    e("L_tail:")
    stamp()
    wave_reduce("v_add_f32", [vL], first=False)
    e(f" v_mov_b32 v{vt}, s{sMx}")
    e(f" v_readlane_b32 s{sT0}, v{vL}, 63")
    e(f" s_lshl_b32 s{sT1}, s{sW}, 3")
    e(f" v_mov_b32 v{vt+2}, s{sT1}")
    e(f" v_mov_b32 v{vt+1}, s{sT0}")
    e(f" ds_write_b128 v{vLdsW}, {vr(vO,4)} offset:{LDS_O}")
    e(f" ds_write_b64 v{vt+2}, {vr(vt,2)} offset:{LDS_ML}")
    e(" s_waitcnt lgkmcnt(0)")
    e(" s_barrier")
    e(f" ds_read_b128 {vr(vt,4)}, v{vZero} offset:{LDS_ML}")
    e(f" ds_read_b128 {vr(vt+4,4)}, v{vZero} offset:{LDS_ML+16}")
    for w in range(4):
        e(f" ds_read_b64 {vr(vXf+2*w,2)}, v{vLdsR} offset:{LDS_O + 512*w}")
    e(" s_waitcnt lgkmcnt(4)")
    e(f" v_max3_f32 v{vt+8}, v{vt}, v{vt+2}, v{vt+4}")
    e(f" v_max_f32 v{vt+8}, v{vt+8}, v{vt+6}")
    for w in range(4): e(f" v_sub_f32 v{vt+2*w}, v{vt+2*w}, v{vt+8}")
    for w in range(4): e(f" v_mul_f32 v{vt+2*w}, s{sLog2e}, v{vt+2*w}")
    for w in range(4): e(f" v_exp_f32 v{vt+2*w}, v{vt+2*w}")
    e(f" v_mul_f32 v{vt+9}, v{vt}, v{vt+1}")
    for w in range(1, 4): e(f" v_fmac_f32 v{vt+9}, v{vt+2*w}, v{vt+2*w+1}")
    e(f" v_rcp_f32 v{vt+10}, v{vt+9}")
    e(" s_waitcnt lgkmcnt(0)")
    e(f" v_mul_f32 v{vPP0}, v{vt}, v{vXf}")
    e(f" v_mul_f32 v{vPP1}, v{vt}, v{vXf+1}")
    for w in range(1, 4):
        e(f" v_fmac_f32 v{vPP0}, v{vt+2*w}, v{vXf+2*w}")
        e(f" v_fmac_f32 v{vPP1}, v{vt+2*w}, v{vXf+2*w+1}")
    e(f" v_mul_f32 v{vPP0}, v{vPP0}, v{vt+10}")
    e(f" v_mul_f32 v{vPP1}, v{vPP1}, v{vt+10}")
    e(f" v_cvt_pk_bf16_f32 v{vPP0}, v{vPP0}, v{vPP0}")
    e(f" v_cvt_pk_bf16_f32 v{vPP1}, v{vPP1}, v{vPP1}")
    e(f" s_cmp_lg_u32 s{sW}, 0")
    e(" s_cbranch_scc1 L_noml")
    e(f" v_and_b32 v{vt+8}, -2, v{vt+8}")
    e(f" v_and_b32 v{vt+9}, -2, v{vt+9}")
    e(f" s_lshl_b32 s{sT0}, s{sHs}, 3")
    e(f" v_add_u32 v{vt+11}, s{sT0}, v{vPm}")
    e(" s_mov_b64 exec, 1")
    e(f" global_store_dwordx2 v{vt+11}, {vr(vt+8,2)}, {sp(sWs)} sc1")
    e(" s_mov_b64 exec, -1")
    e(" s_nop 3")
    e("L_noml:")
    e(f" s_call_b64 {sp(sRet)}, L_gemv")
    for j in range(4): e(f" v_and_b32 v{vY+j}, -2, v{vY+j}")
    e(" s_mov_b32 exec_hi, 0")
    e(f" global_store_dwordx4 v{vOut}, {vr(vY,4)}, {sp(sWs)} sc1")
    e(" s_mov_b64 exec, -1")
    stamp()
    e(f" s_mov_b32 s{sSpin}, 0x40000")
    e("L_poll:")
    e(f" global_load_dwordx2 {vr(vt,2)}, v{vPy}, {sp(sWs)} sc1")
    e(f" global_load_dwordx2 {vr(vt+2,2)}, v{vPm}, {sp(sWs)} sc1")
    e(" s_waitcnt vmcnt(0)")
    e(f" v_max_u32 v{vt+4}, v{vt}, v{vt+1}")
    e(f" v_max3_u32 v{vt+4}, v{vt+2}, v{vt+3}, v{vt+4}")
    e(f" v_cmp_eq_u32 vcc, -1, v{vt+4}")
    e(" s_cbranch_vccz L_got")
    e(f" s_sub_u32 s{sSpin}, s{sSpin}, 1")
    e(f" s_cmp_eq_u32 s{sSpin}, 0")
    e(" s_cbranch_scc1 L_got")
    e(" s_mov_b64 exec, vcc")
    if sleep: e(f" s_sleep {sleep}")
    e(" s_branch L_poll")
    e("L_got:")
    e(" s_mov_b64 exec, -1")
    stamp()
    e(" s_nop 1")
    e(f" v_sub_f32_dpp v{vt+4}, v{vt+2}, v{vt+2} quad_perm:[1,0,3,2] {DPPALL}")
    e(f" v_mov_b32_dpp v{vt+5}, v{vt+3} quad_perm:[1,0,3,2] {DPPALL}")
    e(f" v_mul_f32 v{vt+4}, s{sLog2e}, v{vt+4}")
    e(f" v_exp_f32 v{vt+4}, v{vt+4}")
    e(" s_nop 0")
    e(f" v_fma_f32 v{vt+4}, v{vt+4}, v{vt+5}, v{vt+3}")
    e(f" v_rcp_f32 v{vt+4}, v{vt+4}")
    e(" s_nop 0")
    e(f" v_mul_f32 v{vt+4}, v{vt+4}, v{vt+3}")
    e(f" v_mul_f32 v{vt}, v{vt}, v{vt+4}")
    e(f" v_mul_f32 v{vt+1}, v{vt+1}, v{vt+4}")
    wave_reduce("v_add_f32", [vt, vt+1])
    rnd2(vt, vt+1, vT)
    e(f" v_add_f32 v{vt}, v{vt}, v{vXa}")
    e(f" v_add_f32 v{vt+1}, v{vt+1}, v{vXb}")
    rnd2(vt, vt+1, vT)
    e(f" v_add_f32 v{vt}, v{vt}, v{vBa}")
    e(f" v_add_f32 v{vt+1}, v{vt+1}, v{vBb}")
    e(f" v_cvt_pk_bf16_f32 v{vt}, v{vt}, v{vt+1}")
    e(f" v_mov_b32 v{vt+2}, s{sCol}")
    e(" s_mov_b32 exec_lo, 0\n s_mov_b32 exec_hi, 0x80000000")
    e(f" global_store_dword v{vt+2}, v{vt}, {sp(sOutP)}")
    if stamps:
        e(" s_waitcnt vmcnt(0)")
        stamp()
        e(" s_mov_b64 exec, -1")
        e(" s_getreg_b32 s3, hwreg(HW_REG_XCC_ID)")
        e(" s_waitcnt lgkmcnt(0)")
        for j in range(8):
            e(f" v_mov_b32 v{vt+j}, s{sSt+2*j}")
        e(f" v_mov_b32 v{vt+8}, s3")
        e(f" s_lshl2_add_u32 s{sT0}, s2, s{sW}")
        e(f" s_lshl_b32 s{sT0}, s{sT0}, 6")
        e(f" s_add_u32 s{sT0}, s{sT0}, 0x1000000")
        e(f" v_mov_b32 v{vt+12}, s{sT0}")
        e(f" global_store_dwordx4 v{vt+12}, {vr(vt,4)}, {sp(sWs)}")
        e(f" global_store_dwordx4 v{vt+12}, {vr(vt+4,4)}, {sp(sWs)} offset:16")
        e(f" global_store_dword v{vt+12}, v{vt+8}, {sp(sWs)} offset:32")
        assert nstamp[0] == 8, nstamp
    e("L_end:\n s_endpgm")
    e(f'.section .rodata,"a"\n.p2align 6\n.amdhsa_kernel {kname}')
    e(f"  .amdhsa_next_free_vgpr {NV}\n  .amdhsa_next_free_sgpr 102\n  .amdhsa_accum_offset {ACC}")
    e("  .amdhsa_group_segment_fixed_size 0\n  .amdhsa_kernarg_size 104\n  .amdhsa_user_sgpr_count 2")
    e("  .amdhsa_user_sgpr_kernarg_segment_ptr 1\n  .amdhsa_system_sgpr_workgroup_id_x 1")
    e("  .amdhsa_float_denorm_mode_32 3")
    e(".end_amdhsa_kernel")
    return "\n".join(L) + "\n"

if __name__ == "__main__":
    out = sys.argv[1]
    kw = json.loads(sys.argv[2]) if len(sys.argv) > 2 else {}
    open(out, "w").write(gen(**kw))
```

```python
import sys, struct, json

KNAME = "parallel_sum__gqa_block_cached__mixer_token_mlp__decode_kernel"
def f2u(x): return struct.unpack("<I", struct.pack("<f", x))[0]
def hx(x): return "0x%08x" % (x & 0xffffffff)
LOG2E = 1.4426950408889634
C1 = -2.0 * LOG2E * 0.7978845608028654
C3 = C1 * 0.044715
HEADER = open("parallel_sum__gqa_block_cached__mixer_token_mlp__decode.s.ref").read().split("; Override launch")[0]

def gen(NP=7, W=4, WV=None, Wp=5, D=7, burst=2, flag="nt", wqflag="", woflag="", pfflag="", perm="30124567",
        m=(0,0,2,36,0,0,64,512), stamps=False, kname=KNAME, sleep=0, sleep1=8, prio=2, wopace=1, wqpace=5,
        opn=(8,4), wopen=6, onepoll=1, warm=1, lnat=8, spread=0, rank=None, diag=None, skip="", klast=None, early=1, wqx=0, wox=0, rsh=5, ast=0, cls=0, help=0, hf=1, hset="", hflag="", hwait=1, htiles=1, mlld="sc1", mlsf="sc1", yld="sc1", ysf="sc1", mlstr=7, pre=1, cmap=1, tr=1, dry=0, osf=""):
    L = []; e = L.append
    T = 32
    if WV is None: WV = W
    WKs, WVs = str(W), str(WV)
    assert int(max(WVs)) + 1 <= D <= 7 and int(max(WKs)) + 1 <= D and wopen + 1 <= D
    vT, vMx, vSc, vLdsW = 0, 1, 2, 3
    vOf = 4; vM = 8; vQ = 12; vP = 16; vu = 24; vR0, vR1 = 28, 29; vs0, vs1 = 30, 31
    vAcc = 12; vA0, vA1 = 16, 20; vL, vPP0, vPP1, vSn = 24, 25, 26, 27
    vK = 32
    assert vK + 32 * NP <= 256
    vLane, vO0 = 30, 31
    vt = 32
    vX = 48; vXo, vXc, vB2 = 52, 53, 54; vXf = 56
    vLdsR, vOut, vPy, vPm, vBa, vBb, vXa, vXb, vZero, vHa, vHb, vWq, vWo, vChk = range(64, 78)
    vG = 80; vMl = 84; vWt = 86; vSink = 96
    vW = 128
    sX, sWs = 4, 6
    sWoP, sW1P, sB1P, sW2P, sB2P, sOutP, sDbgP = 8, 12, 14, 16, 18, 20, 22
    sVP = 26
    rK, rWq, rWo, rW1, rB1, rW2 = 32, 40, 44, 48, 52, 56
    sW, sB, sH, sHs, sOff, sBase, sCnt, sPos = 60, 61, 62, 63, 64, 65, 66, 67
    sMx, sScale, sLog2e, sT0, sT1, sT2, sT3 = 68, 69, 70, 71, 72, 73, 74
    sM1, sR1, sCol, sReg, sW8 = 75, 76, 77, 78, 79
    sRet = 80
    sOpen, sC3, sSpin = 82, 83, 84
    sSt = 86
    def srd(r): return f"s[{r}:{r+3}]"
    def sp(r): return f"s[{r}:{r+1}]"
    def vr(r, n): return f"v[{r}:{r+n-1}]"
    LDS_Q, LDS_O, LDS_ML, LDS_RK, LDS_Z, LDS_SC = 0, 2048, 8192, 8256, 8320, 8448
    LDS_SIZE = LDS_SC + 8192 + 64
    WS_ML = 512 * 1024
    WS_F = WS_ML + 65536
    DA = "row_mask:0xf bank_mask:0xf"
    def stamp(i):
        if stamps: e(f" s_memrealtime s[{sSt+2*i}:{sSt+2*i+1}]")
    def wave_reduce(op, regs, first=True):
        steps = ["quad_perm:[1,0,3,2] " + DA, "quad_perm:[2,3,0,1] " + DA] if first else []
        steps += ["row_half_mirror " + DA, "row_mirror " + DA,
                  "row_bcast:15 row_mask:0xa bank_mask:0xf", "row_bcast:31 row_mask:0xc bank_mask:0xf"]
        for st in steps:
            e(f" s_nop {1 if len(regs) == 1 else 0}")
            for r in regs: e(f" {op}_dpp v{r}, v{r}, v{r} {st}")
    def rnd2(a, b, t):
        e(f" v_cvt_pk_bf16_f32 v{t}, v{a}, v{b}")
        e(f" v_lshlrev_b32 v{a}, 16, v{t}")
        e(f" v_and_b32 v{b}, 0xffff0000, v{t}")
    def ln_stats(sm, sr):
        e(f" v_add_f32 v{vt}, v{vXf}, v{vXf+1}")
        e(f" v_add_f32 v{vt+1}, v{vXf+2}, v{vXf+3}")
        e(f" v_add_f32 v{vt+2}, v{vXf+4}, v{vXf+5}")
        e(f" v_add_f32 v{vt+3}, v{vXf+6}, v{vXf+7}")
        e(f" v_add_f32 v{vt}, v{vt}, v{vt+1}")
        e(f" v_add_f32 v{vt+2}, v{vt+2}, v{vt+3}")
        e(f" v_add_f32 v{vt}, v{vt}, v{vt+2}")
        wave_reduce("v_add_f32", [vt])
        e(f" v_mul_f32 v{vt}, {hx(f2u(1/512))}, v{vt}")
        e(" s_nop 0")
        e(f" v_readlane_b32 s{sT0}, v{vt}, 63")
        e(f" v_cvt_pk_bf16_f32 v{vt+9}, v{vt}, v{vt}")
        e(f" v_and_b32 v{vt+9}, 0xffff0000, v{vt+9}")
        for j in range(8): e(f" v_subrev_f32 v{vt+1+j}, s{sT0}, v{vXf+j}")
        e(f" v_readlane_b32 s{sm}, v{vt+9}, 63")
        e(f" v_mul_f32 v{vt}, v{vt+1}, v{vt+1}")
        for j in range(1, 8): e(f" v_fmac_f32 v{vt}, v{vt+1+j}, v{vt+1+j}")
        wave_reduce("v_add_f32", [vt])
        e(f" v_mul_f32 v{vt}, {hx(f2u(1/512))}, v{vt}")
        e(f" v_cvt_pk_bf16_f32 v{vt}, v{vt}, v{vt}")
        e(f" v_and_b32 v{vt}, 0xffff0000, v{vt}")
        e(f" v_add_f32 v{vt}, {hx(f2u(1e-5))}, v{vt}")
        e(f" v_cvt_pk_bf16_f32 v{vt}, v{vt}, v{vt}")
        e(f" v_and_b32 v{vt}, 0xffff0000, v{vt}")
        e(f" v_sqrt_f32 v{vt}, v{vt}")
        e(" s_nop 0")
        e(f" v_cvt_pk_bf16_f32 v{vt}, v{vt}, v{vt}")
        e(f" v_and_b32 v{vt}, 0xffff0000, v{vt}")
        e(f" v_rcp_f32 v{vt}, v{vt}")
        e(" s_nop 1")
        e(f" v_readlane_b32 s{sr}, v{vt}, 63")
        e(" s_nop 1")
    def ln_apply(a, b, sm, sr, t):
        e(f" v_subrev_f32 v{a}, s{sm}, v{a}")
        e(f" v_subrev_f32 v{b}, s{sm}, v{b}")
        rnd2(a, b, t)
        e(f" v_mul_f32 v{a}, s{sr}, v{a}")
        e(f" v_mul_f32 v{b}, s{sr}, v{b}")
        rnd2(a, b, t)
    def masks(t):
        e(f" v_and_b32 v{t}, 15, v{vLane}")
        e(f" v_and_b32 v{t+1}, 1, v{vLane}")
        e(f" v_lshlrev_b32 v{t+1}, 4, v{t+1}")
        e(f" v_mov_b32 v{t+2}, 0xffff")
        e(f" v_lshlrev_b32 v{t+2}, v{t+1}, v{t+2}")
        e(f" v_lshrrev_b32 v{t+3}, 1, v{t}")
        for r in range(4):
            e(f" v_cmp_eq_u32 vcc, {r}, v{t+3}")
            e(" s_nop 1")
            e(f" v_cndmask_b32 v{vM+r}, 0, v{t+2}, vcc")
        e(f" v_lshlrev_b32 v{vLdsW}, 5, v{t}")
        e(f" v_and_b32 v{t+1}, 16, v{vLane}")
        e(f" v_or_b32 v{vLdsW}, v{vLdsW}, v{t+1}")
        e(f" v_and_b32 v{t+1}, 32, v{vLane}")
        e(f" v_lshl_or_b32 v{vLdsW}, v{t+1}, 7, v{vLdsW}")
        e(f" s_lshl_b32 s{sT0}, s{sW}, 9")
        e(f" v_add_u32 v{vLdsW}, s{sT0}, v{vLdsW}")
    assert all((x & 0x19) == 0 for x in m)
    def ld(reg, n):
        e(f" buffer_load_dwordx4 {vr(reg,4)}, v{vOf + (n >> 1)}, {srd(rK)}, s{sOff} offen offset:{(n&1)*1024} {flag}")
    def adv():
        e(f" s_add_u32 s{sPos}, s{sPos}, 32768")
        e(f" s_xor_b32 s{sOff}, s{sBase}, s{sPos}")
    def scores():
        for t in range(2):
            for k in range(2):
                e(f" v_add_f32_dpp v{vu+2*t+k}, v{vP+4*t+k}, v{vP+4*t+k} row_ror:8 row_mask:0xf bank_mask:0x3")
        for t in range(2):
            for k in range(2):
                e(f" v_add_f32_dpp v{vu+2*t+k}, v{vP+4*t+2+k}, v{vP+4*t+2+k} row_ror:8 row_mask:0xf bank_mask:0xc")
        e(f" v_add_f32_dpp v{vR0}, v{vu}, v{vu} row_half_mirror row_mask:0xf bank_mask:0x5")
        e(f" v_add_f32_dpp v{vR1}, v{vu+2}, v{vu+2} row_half_mirror row_mask:0xf bank_mask:0x5")
        e(" s_nop 0")
        e(f" v_add_f32_dpp v{vR0}, v{vu+1}, v{vu+1} row_half_mirror row_mask:0xf bank_mask:0xa")
        e(f" v_add_f32_dpp v{vR1}, v{vu+3}, v{vu+3} row_half_mirror row_mask:0xf bank_mask:0xa")
        e(" s_nop 0")
        e(f" v_add_f32_dpp v{vR0}, v{vR0}, v{vR0} quad_perm:[1,0,3,2] {DA}")
        e(f" v_add_f32_dpp v{vR1}, v{vR1}, v{vR1} quad_perm:[1,0,3,2] {DA}")
        e(" s_nop 0")
        e(f" v_add_f32_dpp v{vR0}, v{vR0}, v{vR0} quad_perm:[2,3,0,1] {DA}")
        e(f" v_add_f32_dpp v{vR1}, v{vR1}, v{vR1} quad_perm:[2,3,0,1] {DA}")
        rnd2(vR0, vR1, vT)
        e(f" v_mul_f32 v{vR0}, s{sScale}, v{vR0}")
        e(f" v_mul_f32 v{vR1}, s{sScale}, v{vR1}")
        rnd2(vR0, vR1, vT)
        e(f" ds_write_b32 v{vSc}, v{vT} offset:{LDS_SC}")
        e(f" v_max3_f32 v{vMx}, v{vR0}, v{vR1}, v{vMx}")
        e(f" v_add_u32 v{vSc}, 64, v{vSc}")
    def write_stamps(role):
        if diag:
            r, terms, base = diag
            if r == role:
                e(" s_waitcnt lgkmcnt(0)")
                e(f" s_mov_b32 s{sT0}, {base*100}")
                for k1, k0, mult in terms:
                    e(f" s_sub_u32 s{sT1}, s{sSt+2*k1}, s{sSt+2*k0}")
                    e(f" s_mul_i32 s{sT1}, s{sT1}, {mult}")
                    e(f" s_add_u32 s{sT0}, s{sT0}, s{sT1}")
                e(f" s_min_u32 s{sT0}, s{sT0}, 100000")
                e("L_diag:")
                e(f" s_memrealtime s[{sSt+2}:{sSt+3}]")
                e(" s_waitcnt lgkmcnt(0)")
                e(f" s_sub_u32 s{sT1}, s{sSt+2}, s{sSt}")
                e(f" s_cmp_lt_u32 s{sT1}, s{sT0}")
                e(" s_cbranch_scc1 L_diag")
            return
        z = 100
        e(" s_mov_b64 exec, -1")
        e(" s_getreg_b32 s3, hwreg(HW_REG_XCC_ID)")
        e(" s_waitcnt lgkmcnt(0)")
        for j in range(8): e(f" v_mov_b32 v{z+j}, s{sSt+2*j}")
        e(f" v_mov_b32 v{z+8}, s3")
        e(f" v_mov_b32 v{z+9}, s{sOpen}")
        e(f" s_lshl3_add_u32 s{sT0}, s2, s{sW8}")
        e(f" s_lshl_b32 s{sT0}, s{sT0}, 6")
        e(f" s_add_u32 s{sT0}, s{sT0}, 0x1000000")
        e(f" v_mov_b32 v{z+12}, s{sT0}")
        e(f" global_store_dwordx4 v{z+12}, {vr(z,4)}, {sp(sWs)}")
        e(f" global_store_dwordx4 v{z+12}, {vr(z+4,4)}, {sp(sWs)} offset:16")
        e(f" global_store_dwordx2 v{z+12}, {vr(z+8,2)}, {sp(sWs)} offset:32")

    e(HEADER.rstrip())
    e(f"; @launch grid=(256,1,1) block=(512,1,1) lds={LDS_SIZE}")
    e('.amdgcn_target "amdgcn-amd-amdhsa--gfx950"')
    e(f".text\n.globl {kname}\n.p2align 8\n.type {kname},@function\n{kname}:")
    e(" s_cmp_ge_u32 s2, 256\n s_cbranch_scc1 L_end")
    stamp(0)
    e(f" s_load_dwordx2 {sp(rK)}, s[0:1], 8")
    e(f" s_load_dwordx2 {sp(rWq)}, s[0:1], 24")
    e(f" s_load_dwordx2 {sp(sX)}, s[0:1], 0")
    e(f" s_load_dwordx2 {sp(sVP)}, s[0:1], 16")
    e(f" s_load_dwordx16 s[8:23], s[0:1], 32")
    e(f" s_load_dwordx2 {sp(sWs)}, s[0:1], 96")
    if stamps:
        for i in range(1, 8): e(f" s_mov_b64 s[{sSt+2*i}:{sSt+2*i+1}], 0")
        e(f" s_mov_b32 s{sOpen}, 0")
    e(f" v_lshrrev_b32 v1, 6, v0")
    e(f" v_and_b32 v{vLane}, 63, v0")
    e(f" v_readfirstlane_b32 s{sW8}, v1")
    e(f" v_lshlrev_b32 v{vO0}, 4, v{vLane}")
    i = 0; first = True
    while i < 8:
        j = i
        while j + 1 < 8 and int(perm[j+1]) == int(perm[j]) + 1: j += 1
        dst = sReg if first else sT0
        e(f" s_bfe_u32 s{dst}, s2, {hx(((j-i+1) << 16) + int(perm[i]))}")
        if i: e(f" s_lshl_b32 s{dst}, s{dst}, {i}")
        if not first: e(f" s_or_b32 s{sReg}, s{sReg}, s{sT0}")
        first = False; i = j + 1
    e(f" s_and_b32 s{sW}, s{sW8}, 3")
    e(f" s_mov_b32 s{sLog2e}, {hx(f2u(LOG2E))}")
    e(f" s_cmp_ge_u32 s{sW8}, 4")
    e(" s_cbranch_scc1 L_aux")

    if prio: e(f" s_setprio {prio}")
    e(f" s_lshl_b32 s{sBase}, s{sReg}, 20")
    e(f" s_lshl_b32 s{sT0}, s{sW}, 13")
    e(f" s_add_u32 s{sBase}, s{sBase}, s{sT0}")
    e(f" s_mov_b32 s{sT1}, 0")
    for i, x in enumerate(m):
        if x:
            e(f" s_bitcmp1_b32 s2, {i}")
            e(f" s_cselect_b32 s{sT0}, {hx(x << 10)}, 0")
            e(f" s_xor_b32 s{sT1}, s{sT1}, s{sT0}")
    e(f" s_and_b32 s{sT0}, s{sT1}, 0xf8000")
    e(f" s_add_u32 s{sBase}, s{sBase}, s{sT0}")
    e(f" s_and_b32 s{sT1}, s{sT1}, 0x1800")
    e(f" v_or_b32 v{vOf}, s{sT1}, v{vO0}")
    for k in range(1, 4): e(f" v_xor_b32 v{vOf+k}, {2048*k}, v{vOf}")
    e(f" s_mov_b32 s{sPos}, 0")
    e(f" s_mov_b32 s{sOff}, s{sBase}")
    e(f" s_mov_b32 s{rK+2}, 0x10000000\n s_mov_b32 s{rK+3}, 0x00020000")
    e(" s_waitcnt lgkmcnt(0)")
    cnt = 0
    for b in range(NP):
        for n in range(8):
            if cnt > Wp and cnt < 8 * NP - burst: e(f" s_waitcnt vmcnt({Wp})")
            ld(vK + 32*b + 4*n, n)
            cnt += 1
            if cnt == Wp + 1:
                masks(vP)
                e(f" s_mov_b32 s{sScale}, {hx(f2u(128 ** -0.5))}")
                e(f" v_mov_b32 v{vMx}, 0xff800000")
                e(f" s_lshl_b32 s{sT0}, s{sW}, 11")
                e(f" v_and_b32 v{vSc}, 60, v{vLane}")
                e(f" v_add_u32 v{vSc}, s{sT0}, v{vSc}")
                e(f" v_and_b32 v{vT}, 15, v{vLane}")
                e(f" v_lshlrev_b32 v{vT}, 5, v{vT}")
                e(f" s_mov_b32 s{sCnt}, {T - NP}")
        adv()
    stamp(1)
    e(" s_barrier")
    stamp(2)
    for hh in range(2):
        for w in range(4): e(f" ds_read_b128 {vr(vP+4*w,4)}, v{vT} offset:{LDS_Q+512*w+16*hh}")
        e(" s_waitcnt lgkmcnt(0)")
        for j in range(4): e(f" v_add_f32 v{vP+j}, v{vP+j}, v{vP+4+j}")
        for j in range(4): e(f" v_add_f32 v{vP+8+j}, v{vP+8+j}, v{vP+12+j}")
        for j in range(4): e(f" v_add_f32 v{vP+j}, v{vP+j}, v{vP+8+j}")
        for j in range(2): e(f" v_cvt_pk_bf16_f32 v{vQ+2*hh+j}, v{vP+2*j}, v{vP+2*j+1}")
    issued = 0
    for b in range(NP):
        kb = vK + 32 * b
        e(f" s_waitcnt vmcnt({8*(NP-1-b) + issued})")
        for r in range(4):
            for n in range(8):
                c = "0" if r == 0 else f"v{vP+n}"
                e(f" v_dot2_f32_bf16 v{vP+n}, v{kb+4*n+r}, v{vQ+r}, {c}")
        k = D - issued if (spread == 0 or b == NP - 2) else min(spread, D - issued)
        for n in range(issued, issued + k): ld(vK + 4*n, n)
        issued += k
        scores()
    assert issued == D
    stamp(6)
    if klast: e(" s_mov_b64 vcc, -1")
    e("L_kloop:")
    for n in range(8):
        if n == 8 - D:
            e(f" s_add_u32 s{sPos}, s{sPos}, 32768")
            e(f" s_sub_u32 s{sCnt}, s{sCnt}, 1")
            e(f" s_cmp_eq_u32 s{sCnt}, 0")
            e(f" s_cselect_b32 s{rK}, s{sVP}, s{rK}")
            e(f" s_cselect_b32 s{rK+1}, s{sVP+1}, s{rK+1}")
            e(f" s_cselect_b32 s{sPos}, 0, s{sPos}")
            if klast: e(" s_cselect_b64 vcc, 0, -1")
            e(f" s_xor_b32 s{sOff}, s{sBase}, s{sPos}")
        if klast and n >= 8 - klast:
            e(f" s_waitcnt vmcnt({wopen})")
            e(f" s_cbranch_vccz L_ko{n}")
        e(f" s_waitcnt vmcnt({WKs[n % len(WKs)]})")
        if klast and n >= 8 - klast: e(f"L_ko{n}:")
        mm = (n + D) % 8
        ld(vK + 4*mm, mm)
        for r in range(4):
            c = "0" if r == 0 else f"v{vP+n}"
            e(f" v_dot2_f32_bf16 v{vP+n}, v{vK+4*n+r}, v{vQ+r}, {c}")
    scores()
    e(f" s_cmp_lg_u32 s{sCnt}, 0")
    e(" s_cbranch_scc1 L_kloop")
    stamp(3)
    e(f" v_subrev_u32 v{vSc}, {64*T}, v{vSc}")
    e(f" v_mov_b32 v{vL}, 0")
    e(f" ds_read_b32 v{vSn}, v{vSc} offset:{LDS_SC}")
    if rank: e(f" ds_read_b32 v{vs0}, v{vL} offset:{LDS_RK}")
    for j in range(4): e(f" v_mov_b32 v{vAcc+j}, 0")
    wave_reduce("v_max_f32", [vMx], first=False)
    e(f" s_mov_b32 s{sCnt}, {T}")
    e(f" v_readlane_b32 s{sMx}, v{vMx}, 63")
    if opn:
        e("; the last tiles run with a wider window (speed only)")
        tab = list(opn) * 4 if len(opn) == 2 else list(opn)
        lit = sum(v << (4 * i) for i, v in enumerate(tab))
        e(f" s_getreg_b32 s{sOpen}, hwreg(HW_REG_XCC_ID, 0, 3)")
        e(f" s_lshl_b32 s{sOpen}, s{sOpen}, 2")
        e(f" s_lshr_b32 s{sOpen}, {hx(lit)}, s{sOpen}")
        e(f" s_and_b32 s{sOpen}, s{sOpen}, 15")
        if cls:
            e(f" s_bfe_u32 s{sT0}, s{sReg}, 0x20001")
            e(f" s_cmp_eq_u32 s{sT0}, 1")
            e(f" s_cselect_b32 s{sT0}, {cls}, 0")
            e(f" s_add_u32 s{sOpen}, s{sOpen}, s{sT0}")
        if rank:
            e(" s_waitcnt lgkmcnt(0)")
            e(f" v_readfirstlane_b32 s{sT0}, v{vs0}")
            e(f" s_add_u32 s{sOpen}, s{sOpen}, s{sT0}")
        e(" s_mov_b64 vcc, -1")
    vh = 64
    if help:
        e(f" s_and_b32 s{sT2}, s2, 7")
        e(f" s_lshl_b32 s{sT2}, s{sT2}, 7")
        e(f" s_lshr_b32 s{sT3}, s2, 3")
        e(f" s_lshl2_add_u32 s{sT2}, s{sT3}, s{sT2}")
        e(f" s_add_u32 s{sT2}, s{sT2}, {WS_F}")
        e(f" s_cmp_eq_u32 s{sW}, 0")
        e(f" s_cselect_b32 s{sT3}, {hf}, -1")
    e("; ---- V pass")
    e("L_vloop:")
    e(" s_waitcnt lgkmcnt(0)")
    e(f" v_lshlrev_b32 v{vR0}, 16, v{vSn}")
    e(f" v_and_b32 v{vR1}, 0xffff0000, v{vSn}")
    e(f" ds_read_b32 v{vSn}, v{vSc} offset:{LDS_SC+64}")
    e(f" v_subrev_f32 v{vR0}, s{sMx}, v{vR0}")
    e(f" v_subrev_f32 v{vR1}, s{sMx}, v{vR1}")
    e(f" v_mul_f32 v{vR0}, s{sLog2e}, v{vR0}")
    e(f" v_mul_f32 v{vR1}, s{sLog2e}, v{vR1}")
    e(f" v_exp_f32 v{vR0}, v{vR0}")
    e(f" v_exp_f32 v{vR1}, v{vR1}")
    e(f" v_add_u32 v{vSc}, 64, v{vSc}")
    e(f" v_cvt_pk_bf16_f32 v{vPP0}, v{vR0}, v{vR0}")
    e(f" v_cvt_pk_bf16_f32 v{vPP1}, v{vR1}, v{vR1}")
    e(f" v_add_f32 v{vL}, v{vL}, v{vR0}")
    e(f" v_add_f32 v{vL}, v{vL}, v{vR1}")
    for n in range(8):
        a = vA0 if n % 2 == 0 else vA1
        src = vPP0 if n < 4 else vPP1
        for r in range(4):
            e(f" v_and_b32_dpp v{a+r}, v{src}, v{vM+r} row_newbcast:{4*(n&3)} {DA}")
        if n == 8 - D:
            adv()
            e(f" s_sub_u32 s{sCnt}, s{sCnt}, 1")
            if opn:
                e(f" s_cmp_gt_u32 s{sCnt}, s{sOpen}")
                e(" s_cselect_b64 vcc, -1, 0")
            if stamps and not diag:
                for k, cc in ((7, 1), (1, 2), (2, 4)):
                    e(f" s_cmp_lg_u32 s{sCnt}, {cc}\n s_cbranch_scc1 L_vst{k}")
                    stamp(k)
                    e(f"L_vst{k}:")
            if help:
                e(f" s_cmp_lg_u32 s{sCnt}, s{sT3}")
                e(" s_cbranch_scc1 L_nflag")
                e(f" v_mov_b32 v{vs0}, s{sT2}")
                e(f" v_mov_b32 v{vs1}, 0")
                e(" s_mov_b64 exec, 1")
                e(f" global_store_dword v{vs0}, v{vs1}, {sp(sWs)} {hset}")
                e(" s_mov_b64 exec, -1")
                e("L_nflag:")
            e(f" s_cmp_eq_u32 s{sCnt}, 0")
            e(f" s_cselect_b32 s{rK+2}, 0, s{rK+2}")
            e(" s_cbranch_scc0 L_notlast")
            if help:
                e(f" v_lshrrev_b32 v{vh}, 2, v{vOf}")
                e(f" v_and_b32 v{vh}, 0x7c, v{vh}")
                e(f" s_and_b32 s{sT1}, s{sT2}, 0xffffff80")
                e(f" v_add_u32 v{vh+1}, s{sT1}, v{vh}")
                e(f" global_load_dword v{vh+2}, v{vh+1}, {sp(sWs)} sc1")
                e(f" s_cmp_eq_u32 s{sCnt}, 0")
            wave_reduce("v_add_f32", [vL], first=False)
            e(f" v_mov_b32 v{vs0}, s{sMx}")
            e(f" v_readlane_b32 s{sT0}, v{vL}, 63")
            e(f" v_mov_b32 v{vT}, s{sW}")
            e(f" v_lshlrev_b32 v{vT}, 3, v{vT}")
            e(f" v_mov_b32 v{vs1}, s{sT0}")
            e(f" ds_write_b64 v{vT}, {vr(vs0,2)} offset:{LDS_ML}")
            e(" s_waitcnt lgkmcnt(0)")
            e(" s_barrier")
            e("L_notlast:")
        if opn:
            e(f" s_waitcnt vmcnt({wopen})")
            e(f" s_cbranch_vccz L_vo{n}")
        e(f" s_waitcnt vmcnt({WVs[n % len(WVs)]})")
        if opn: e(f"L_vo{n}:")
        mm = (n + D) % 8
        ld(vK + 4*mm, mm)
        e(f" v_mfma_f32_16x16x32_bf16 {vr(vAcc,4)}, {vr(a,4)}, {vr(vK+4*n,4)}, {vr(vAcc,4)}")
    e(" s_cbranch_scc0 L_vloop")
    stamp(4)
    if tr:
        e(f" v_lshrrev_b32 v{vLdsW}, 1, v{vLdsW}")
        e(" s_nop 6")
        e(f" v_cvt_pk_bf16_f32 v{vR0}, v{vAcc}, v{vAcc+1}")
        e(f" v_cvt_pk_bf16_f32 v{vR1}, v{vAcc+2}, v{vAcc+3}")
        e(f" ds_write_b64 v{vLdsW}, {vr(vR0,2)} offset:{LDS_O}")
    else:
        e(" s_nop 7")
        e(f" ds_write_b128 v{vLdsW}, {vr(vAcc,4)} offset:{LDS_O}")
    e(" s_waitcnt lgkmcnt(0)")
    e(" s_barrier")
    if help:
        e("; ---- done: pull the last V tile of slower neighbours (same XCD in practice) into L2 (speed only)")
        e(f" v_lshrrev_b32 v{vh}, 2, v{vh}                   ; j' = lane & 31")
        e(f" s_lshr_b32 s{sT1}, s2, 3")
        e(f" v_xor_b32 v{vh}, s{sT1}, v{vh}                   ; j ^ j'")
        e(f" v_mov_b32 v{vh+3}, s{sBase}")
        e(f" v_xor_b32 v{vh+3}, {hx(31*32768)}, v{vh+3}")
        for jb in range(5):
            f = (1 << (20 + perm.index(str(3 + jb)))) ^ ((m[3 + jb] << 10) & 0xf8000)
            e(f" v_bfe_i32 v{vh+4}, v{vh}, {jb}, 1")
            e(f" v_and_b32 v{vh+4}, {hx(f)}, v{vh+4}")
            e(f" v_xor_b32 v{vh+3}, v{vh+3}, v{vh+4}")
        e(f" v_and_b32 v{vh+5}, 0x3f0, v{vOf}")
        e(f" v_lshlrev_b32 v{vh+5}, 3, v{vh+5}               ; lane * 128")
        e(f" s_mov_b32 s{rK+2}, 0x10000000")
        e(" s_waitcnt vmcnt(0)")
        e(f" v_cmp_eq_u32 vcc, -1, v{vh+2}")
        e(f" s_lshr_b64 s[{sT2+0}:{sT2+1}], vcc, s{sT1}") if (sT2 % 2 == 0) else e(f" s_lshr_b64 s[24:25], vcc, s{sT1}")
        e(f" s_mov_b32 s{sCnt}, {help}")
        if stamps: e(f" s_bcnt1_i32_b32 s{sOpen}, s24")
        e("L_help:")
        e(f" s_cmp_eq_u32 s24, 0")
        e(" s_cbranch_scc1 L_helped")
        e(f" s_ff1_i32_b32 s{sT0}, s24")
        e(f" s_bitset0_b32 s24, s{sT0}")
        e(f" s_add_u32 s{sT0}, s{sT0}, s{sT1}")
        e(f" v_readlane_b32 s{sOff}, v{vh+3}, s{sT0}")
        e(" s_nop 4")
        if hwait is not None: e(f" s_waitcnt vmcnt({hwait})")
        e(f" buffer_load_dword v{vh+6}, v{vh+5}, {srd(rK)}, s{sOff} offen {hflag}")
        if htiles == 2:
            e(f" s_xor_b32 s{sOff}, s{sOff}, 32768")
            if hwait is not None: e(f" s_waitcnt vmcnt({hwait})")
            e(f" buffer_load_dword v{vh+6}, v{vh+5}, {srd(rK)}, s{sOff} offen {hflag}")
        e(f" s_sub_u32 s{sCnt}, s{sCnt}, 1")
        e(f" s_cmp_lg_u32 s{sCnt}, 0")
        e(" s_cbranch_scc1 L_help")
        e("L_helped:")
        if onepoll: e(" s_barrier")
    if stamps:
        stamp(5)
        write_stamps("stream")
    e(" s_endpgm")

    e("L_aux:")
    def warm_code(few):
        e("; pull this kernel's code into L2 (one dword per 128-byte line)")
        e(f" s_getpc_b64 s[24:25]")
        e("L_pc:")
        e(f" s_sub_u32 s24, s24, L_pc-{kname}")
        e(f" s_subb_u32 s25, s25, 0")
        e(f" s_lshl_b32 s{sT0}, s{sW}, 13")
        e(f" v_lshl_add_u32 v{vt+12}, v{vLane}, 7, s{sT0}")
        e(f" v_min_u32 v{vt+12}, L_codeend-{kname}-4, v{vt+12}")
        e(f" s_cmp_ge_u32 s{sW}, 2")
        e(" s_cbranch_scc1 L_nowarm")
        if few:
            e(f" s_cmp_ge_u32 s2, {few}")
            e(" s_cbranch_scc1 L_nowarm")
        e(f" global_load_dword v{vSink+16}, v{vt+12}, s[24:25]")
        e("L_nowarm:")
    if warm == 1: warm_code(0)
    if warm == 3: warm_code(8)
    e(f" s_lshr_b32 s{sB}, s{sReg}, 6")
    e(f" s_and_b32 s{sHs}, s{sReg}, 63")
    e(f" s_lshr_b32 s{sH}, s{sHs}, 1")
    e(f" s_mov_b32 s{rWq+2}, 0x400000\n s_mov_b32 s{rWq+3}, 0x00020000")
    e(f" v_and_b32 v{vt}, 0x300, v{vO0}                 ; (l>>4)*256")
    e(f" v_and_b32 v{vt+2}, 0xf0, v{vO0}                ; c*16")
    e(f" v_lshl_or_b32 v{vWq}, v{vt}, {5 + rsh}, v{vt+2}")
    e(f" v_lshl_or_b32 v{vWo}, v{vt}, 7, v{vt+2}")
    e(f" s_lshl_b32 s{sT1}, s{sB}, 10")
    e(f" v_add_u32 v{vt}, s{sT1}, v{vO0}")
    e(f" s_lshl_b32 s{sT2}, s{sW}, 8")
    e(f" s_add_u32 s{sT1}, s{sT1}, s{sT2}")
    e(f" s_and_b32 s{sT3}, s{sReg}, 1")
    e(f" s_lshl1_add_u32 s{sT3}, s{sB}, s{sT3}")
    def spr(i): return (i & ((1 << rsh) - 1)) | ((i >> rsh) << (rsh + 2))
    e(f" s_lshl_b32 s{sT2}, s{sT3}, 1")
    e(f" v_xor_b32 v{vt+1}, s{sT2}, v{vLane}")
    if rsh == 5:
        e(f" v_lshl_add_u32 v{vt+1}, v{vt+1}, 2, s{sT1}")
    else:
        e(f" v_and_b32 v{vt+3}, 15, v{vt+1}")
        e(f" v_lshlrev_b32 v{vt+3}, 1, v{vt+3}               ; slot 2c ^ 4k")
        e(f" v_and_b32 v{vt+15}, {(1 << rsh) - 1}, v{vt+3}")
        e(f" v_lshrrev_b32 v{vt+3}, {rsh}, v{vt+3}")
        e(f" v_lshl_or_b32 v{vt+3}, v{vt+3}, {rsh + 2}, v{vt+15}")
        e(f" v_lshrrev_b32 v{vt+1}, 4, v{vLane}")
        e(f" v_lshl_or_b32 v{vt+1}, v{vt+1}, {rsh}, v{vt+3}")
        e(f" v_lshl_add_u32 v{vt+1}, v{vt+1}, 1, s{sT1}")
    e(f" s_lshl_b32 s{sBase}, s{sW}, 20")
    e(f" s_lshl_b32 s{sT1}, s{sH}, 8")
    if wqx: e(f" s_xor_b32 s{sT1}, s{sT1}, {wqx << 8}")
    e(f" s_add_u32 s{sBase}, s{sBase}, s{sT1}")
    if rsh == 5: e(f" s_lshl_b32 s{sT1}, s{sT3}, 15")
    elif rsh <= 2: e(f" s_lshl_b32 s{sT1}, s{sT3}, 17")
    else:
        e(f" s_lshl_b32 s{sT1}, s{sT3}, 2")
        e(f" s_and_b32 s{sT2}, s{sT1}, {(1 << rsh) - 1}")
        e(f" s_lshr_b32 s{sT1}, s{sT1}, {rsh}")
        e(f" s_lshl_b32 s{sT1}, s{sT1}, {rsh + 2}")
        e(f" s_or_b32 s{sT1}, s{sT1}, s{sT2}")
        e(f" s_lshl_b32 s{sT1}, s{sT1}, 13")
    e(f" s_add_u32 s{sBase}, s{sBase}, s{sT1}")
    e(f" s_lshl_b32 s{sPos}, s{sH}, 17")
    if wox: e(f" s_xor_b32 s{sPos}, s{sPos}, {wox << 17}")
    e(f" s_lshl_b32 s{sT1}, s{sT3}, 14")
    e(f" s_add_u32 s{sPos}, s{sPos}, s{sT1}")
    e(f" s_lshl_b32 s{sT1}, s{sW}, 12")
    e(f" s_add_u32 s{sPos}, s{sPos}, s{sT1}")
    e(f" v_add_u32 v{vt+14}, s{sPos}, v{vO0}")
    if early:
        e(f" s_lshl_b32 s{sT0}, s{sReg}, 11")
        e(f" v_add_u32 v{vt+9}, s{sT0}, v{vO0}")
        e(f" s_lshl_b32 s{sT0}, s{sReg}, {mlstr}")
        e(f" s_add_u32 s{sT0}, s{sT0}, {WS_ML}")
        e(f" v_mov_b32 v{vt+8}, s{sT0}")
        for j in range(4): e(f" v_mov_b32 v{vt+4+j}, -1")
    e(" s_waitcnt lgkmcnt(0)")
    if early:
        e(f" s_cmp_lg_u32 s{sW}, 0")
        e(" s_cbranch_scc1 L_nc")
        e(f" global_store_dwordx4 v{vt+9}, {vr(vt+4,4)}, {sp(sWs)} sc1")
        e(f" global_store_dwordx4 v{vt+9}, {vr(vt+4,4)}, {sp(sWs)} offset:1024 sc1")
        e(" s_mov_b64 exec, 1")
        if 'mlclear' not in skip: e(f" global_store_dwordx2 v{vt+8}, {vr(vt+4,2)}, {sp(sWs)} sc1")
        if help:
            e(f" s_and_b32 s{sT0}, s2, 7")
            e(f" s_lshl_b32 s{sT0}, s{sT0}, 7")
            e(f" s_lshr_b32 s{sT1}, s2, 3")
            e(f" s_lshl2_add_u32 s{sT0}, s{sT1}, s{sT0}")
            e(f" s_add_u32 s{sT0}, s{sT0}, {WS_F}")
            e(f" v_mov_b32 v{vt+10}, s{sT0}")
            e(f" global_store_dword v{vt+10}, v{vt+4}, {sp(sWs)} sc1")
        e(" s_mov_b64 exec, -1")
        e("L_nc:")
    e(f" global_load_dwordx4 {vr(vX,4)}, v{vt}, {sp(sX)}")
    if rsh >= 1: e(f" global_load_dword v{vXo}, v{vt+1}, {sp(sX)}")
    else:
        e(f" global_load_short_d16 v{vXo}, v{vt+1}, {sp(sX)}")
        e(f" global_load_short_d16_hi v{vXo}, v{vt+1}, {sp(sX)} offset:8")
    nafter = [0]
    def wq_loads(lo, hi):
        for i in range(lo, hi):
            e(f" s_xor_b32 s{sOff}, s{sBase}, {spr(i)*8192}")
            if wqpace and i >= lnat: e(f" s_waitcnt vmcnt({wqpace-1})")
            if ast and i == 8: stamp(3)
            if ast and i == 16: stamp(4)
            if ast and i == 24: stamp(5)
            e(f" buffer_load_dwordx4 {vr(vW+4*i,4)}, v{vWq}, {srd(rWq)}, s{sOff} offen {wqflag}"); nafter[0] += 1
            if i == 3:
                e("; this workgroup's eighth of the wo slice goes to L2 now, together with wq")
                for n in range(4):
                    e(f" global_load_dwordx4 {vr(vSink+4*n,4)}, v{vt+14}, {sp(sWoP)} offset:{1024*n} {pfflag}"); nafter[0] += 1
    assert lnat >= 4
    wq_loads(0, lnat)
    e(f" s_lshl_b32 s{sT0}, s{sReg}, 11")
    e(f" s_lshl_b32 s{sT1}, s{sW}, 9")
    e(f" s_add_u32 s{sT0}, s{sT0}, s{sT1}")
    e(f" v_add_u32 v{vOut}, s{sT0}, v{vO0}")
    for j in range(4): e(f" v_mov_b32 v{vt+4+j}, -1")
    if cmap:
        e("; this wave finishes floats f, f+1 of every box; the 8 workgroups with equal h & 7 share two box lines and one line of out")
        e(f" s_bfe_u32 s{sT0}, s{sH}, 0x20001")
        e(f" s_lshr_b32 s{sT1}, s{sH}, 4")
        e(f" s_lshl1_add_u32 s{sT0}, s{sT0}, s{sT1}")
        e(f" s_and_b32 s{sT1}, s{sH}, 1")
        e(f" s_lshl1_add_u32 s{sT0}, s{sT0}, s{sT1}")
        e(f" s_bfe_u32 s{sT1}, s{sH}, 0x10003")
        e(f" s_lshl1_add_u32 s{sT0}, s{sT0}, s{sT1}")
        e(f" s_and_b32 s{sT1}, s{sHs}, 1")
        e(f" s_lshl1_add_u32 s{sT0}, s{sT0}, s{sT1}")
        e(f" s_lshl_b32 s{sT0}, s{sT0}, 3")
    else:
        e(f" s_lshl_b32 s{sT0}, s{sHs}, 3")
    e(f" s_lshl1_add_u32 s{sT0}, s{sW}, s{sT0}          ; f")
    e(f" s_and_b32 s{sCol}, s{sT0}, 0x183")
    e(f" s_bfe_u32 s{sT1}, s{sT0}, 0x40002")
    e(f" s_lshl3_add_u32 s{sCol}, s{sT1}, s{sCol}")
    e(f" s_bfe_u32 s{sT1}, s{sT0}, 0x10006")
    e(f" s_lshl2_add_u32 s{sCol}, s{sT1}, s{sCol}")
    e(f" s_lshl_b32 s{sT1}, s{sB}, 9")
    e(f" s_add_u32 s{sCol}, s{sCol}, s{sT1}")
    e(f" s_lshl_b32 s{sCol}, s{sCol}, 1")
    e(f" s_lshl_b32 s{sT1}, s{sB}, 17")
    e(f" s_lshl2_add_u32 s{sT1}, s{sT0}, s{sT1}")
    e(f" v_lshlrev_b32 v{vPy}, 11, v{vLane}")
    e(f" v_add_u32 v{vPy}, s{sT1}, v{vPy}")
    e(f" s_lshl_b32 s{sT1}, s{sB}, {6 + mlstr}")
    e(f" s_add_u32 s{sT1}, s{sT1}, {WS_ML}")
    e(f" v_lshlrev_b32 v{vLdsR}, 3, v{vLane}")
    e(f" v_lshl_add_u32 v{vPm}, v{vLane}, {mlstr}, s{sT1}")
    e(f" s_lshl_b32 s{sT0}, s{sHs}, {mlstr}")
    e(f" v_add_u32 v{vt+8}, s{sT0}, v{vPm}")
    e(f" v_mov_b32 v{vt+2}, s{sCol}")
    e(f" v_mov_b32 v{vZero}, 0")
    if not early:
        e(" s_mov_b32 exec_hi, 0")
        e(f" global_store_dwordx4 v{vOut}, {vr(vt+4,4)}, {sp(sWs)} sc1"); nafter[0] += 1
        e(" s_mov_b64 exec, 1")
        e(f" s_cmp_lg_u32 s{sW}, 0")
        e(" s_cbranch_scc1 L_nc")
        e(f" global_store_dwordx2 v{vt+8}, {vr(vt+4,2)}, {sp(sWs)} sc1")
        if rank: e(f" ds_write_b32 v{vZero}, v{vZero} offset:{LDS_RK}")
        e("L_nc:")
        e(" s_mov_b64 exec, -1")
    e(f" global_load_dword v{vXc}, v{vt+2}, {sp(sX)}"); nafter[0] += 1
    e(f" global_load_ushort v{vB2}, v{vZero}, {sp(sB2P)}"); nafter[0] += 1
    masks(vt + 10)
    e(f" s_lshl_b32 s{sT0}, s{sB}, 6")
    e(f" v_mov_b32 v{vChk}, s{sT0}")
    e(f" s_waitcnt vmcnt({nafter[0]})")
    if early:
        e("; ---- the boxes are empty (older than the x loads): count this workgroup in d_debug[16 b]")
        e(f" s_cmp_lg_u32 s{sW}, 0")
        e(" s_cbranch_scc1 L_nosig")
        e(f" v_mov_b32 v{vt+11}, 1")
        e(" s_mov_b64 exec, 1")
        e(f" global_atomic_add v{vChk}, v{vt+11}, {sp(sDbgP)} sc1")
        e(" s_mov_b64 exec, -1")
        e("L_nosig:")
    if ast: stamp(6)
    if warm == 2: warm_code(8)
    for j in range(4):
        e(f" v_lshlrev_b32 v{vXf+2*j}, 16, v{vX+j}")
        e(f" v_and_b32 v{vXf+2*j+1}, 0xffff0000, v{vX+j}")
    ln_stats(sM1, sR1)
    e(f" v_lshlrev_b32 v{vPP0}, 16, v{vXo}")
    e(f" v_and_b32 v{vPP1}, 0xffff0000, v{vXo}")
    ln_apply(vPP0, vPP1, sM1, sR1, vT)
    e(f" v_cvt_pk_bf16_f32 v{vPP0}, v{vPP0}, v{vPP0}")
    e(f" v_cvt_pk_bf16_f32 v{vPP1}, v{vPP1}, v{vPP1}")
    wq_loads(lnat, 32)
    NX = 2
    e(f" global_load_dword v{vSink+17}, v{vZero}, {sp(sX)}")
    e(f" global_load_dword v{vSink+18}, v{vZero}, {sp(sX)}")
    stamp(1)
    e(f" s_call_b64 {sp(sRet)}, L_gemv")
    e(f" ds_write_b128 v{vLdsW}, {vr(vAcc,4)} offset:{LDS_Q}")
    e(" s_waitcnt vmcnt(0) lgkmcnt(0)")
    stamp(2)
    e(" s_barrier")
    if not early:
        e("; ---- count this workgroup's empty boxes in d_debug[16 b]")
        e(f" s_lshl_b32 s{sT0}, s{sB}, 6")
        e(f" v_mov_b32 v{vChk}, s{sT0}")
        e(f" s_cmp_lg_u32 s{sW}, 0")
        e(" s_cbranch_scc1 L_nosig")
        e(f" v_mov_b32 v{vt+11}, 1")
        e(" s_mov_b64 exec, 1")
        if rank:
            e(f" global_atomic_add v{vt+10}, v{vChk}, v{vt+11}, {sp(sDbgP)} sc0 sc1")
            e(" s_waitcnt vmcnt(0)")
            e(f" v_and_b32 v{vt+10}, 63, v{vt+10}")
            e(f" v_mul_u32_u24 v{vt+10}, {rank}, v{vt+10}")
            e(f" v_lshrrev_b32 v{vt+10}, 6, v{vt+10}")
            e(f" ds_write_b32 v{vZero}, v{vt+10} offset:{LDS_RK}")
        else:
            e(f" global_atomic_add v{vChk}, v{vt+11}, {sp(sDbgP)} sc1")
        e(" s_mov_b64 exec, -1")
        e("L_nosig:")
    for r, p, n in ((rWo, sWoP, 0x400000), (rW1, sW1P, 2752), (rB1, sB1P, 2752), (rW2, sW2P, 2752)):
        e(f" s_mov_b32 s{r}, s{p}\n s_mov_b32 s{r+1}, s{p+1}\n s_mov_b32 s{r+2}, {hx(n)}\n s_mov_b32 s{r+3}, 0x00020000")
    e(f" s_lshl_b32 s{sOff}, s{sH}, 17")
    e(f" s_lshl_b32 s{sT0}, s{sW}, 8")
    e(f" s_add_u32 s{sOff}, s{sOff}, s{sT0}")
    for i in range(32):
        if i > wopace - 1: e(f" s_waitcnt vmcnt({wopace - 1})")
        e(f" buffer_load_dwordx4 {vr(vW+4*i,4)}, v{vWo}, {srd(rWo)}, s{sOff} offen offset:{1024*(i&3)} {woflag}")
        if i & 3 == 3: e(f" s_add_u32 s{sOff}, s{sOff}, 4096")
    for j in range(4): ln_apply(vXf + 2*j, vXf + 2*j + 1, sM1, sR1, vT)
    e(f" v_lshlrev_b32 v{vXa}, 16, v{vXc}")
    e(f" v_and_b32 v{vXb}, 0xffff0000, v{vXc}")
    e(f" v_mov_b32 v{vHa}, v{vXa}")
    e(f" v_mov_b32 v{vHb}, v{vXb}")
    ln_apply(vHa, vHb, sM1, sR1, vT)
    ln_stats(sT2, sT3)
    ln_apply(vHa, vHb, sT2, sT3, vT)
    e(f" s_mov_b32 s{sC3}, {hx(f2u(C3))}")
    e(f" v_mov_b32 v{vXf+7}, {hx(f2u(C1))}")
    e(f" v_mov_b32 v{vBa}, 0")
    e(f" v_mov_b32 v{vBb}, 0")
    e(f" v_lshlrev_b32 v{vXf}, 2, v{vLane}")
    e(f" s_mov_b32 s{sT0}, 11")
    e("L_mlp:")
    e(f" buffer_load_dword v{vXf+1}, v{vXf}, {srd(rW1)}, 0 offen")
    e(f" buffer_load_dword v{vXf+3}, v{vXf}, {srd(rB1)}, 0 offen")
    e(f" buffer_load_dword v{vXf+5}, v{vXf}, {srd(rW2)}, 0 offen")
    e(f" v_add_u32 v{vXf}, 256, v{vXf}")
    e(" s_waitcnt vmcnt(0)")
    e(f" v_and_b32 v{vXf+2}, 0xffff0000, v{vXf+1}")
    e(f" v_lshlrev_b32 v{vXf+1}, 16, v{vXf+1}")
    e(f" v_and_b32 v{vXf+4}, 0xffff0000, v{vXf+3}")
    e(f" v_lshlrev_b32 v{vXf+3}, 16, v{vXf+3}")
    u = [vt, vt+1, vt+2, vt+3]; z = [vt+4, vt+5, vt+6, vt+7]; hs = [vHa, vHa, vHb, vHb]
    for k in range(4): e(f" v_mul_f32 v{u[k]}, v{hs[k]}, v{vXf+1+(k&1)}")
    rnd2(u[0], u[1], vt+8); rnd2(u[2], u[3], vt+9)
    for k in range(4): e(f" v_add_f32 v{u[k]}, v{u[k]}, v{vXf+3+(k&1)}")
    rnd2(u[0], u[1], vt+8); rnd2(u[2], u[3], vt+9)
    for k in range(4): e(f" v_mul_f32 v{z[k]}, v{u[k]}, v{u[k]}")
    for k in range(4): e(f" v_fma_f32 v{z[k]}, v{z[k]}, s{sC3}, v{vXf+7}")
    for k in range(4): e(f" v_mul_f32 v{z[k]}, v{z[k]}, v{u[k]}")
    for k in range(4): e(f" v_exp_f32 v{z[k]}, v{z[k]}")
    e(" s_nop 0")
    for k in range(4): e(f" v_add_f32 v{z[k]}, 1.0, v{z[k]}")
    for k in range(4): e(f" v_rcp_f32 v{z[k]}, v{z[k]}")
    e(" s_nop 0")
    for k in range(4): e(f" v_mul_f32 v{u[k]}, v{u[k]}, v{z[k]}")
    e(f" v_cvt_pk_bf16_f32 v{vt+8}, v{u[0]}, v{u[1]}")
    e(f" v_cvt_pk_bf16_f32 v{vt+9}, v{u[2]}, v{u[3]}")
    e(f" v_dot2_f32_bf16 v{vBa}, v{vt+8}, v{vXf+5}, v{vBa}")
    e(f" v_dot2_f32_bf16 v{vBb}, v{vt+9}, v{vXf+5}, v{vBb}")
    e(f" s_sub_u32 s{sT0}, s{sT0}, 1")
    e(f" s_cmp_lg_u32 s{sT0}, 0")
    e(" s_cbranch_scc1 L_mlp")
    e(" s_nop 1")
    wave_reduce("v_add_f32", [vBa, vBb])
    rnd2(vBa, vBb, vT)
    e(f" v_lshlrev_b32 v{vB2}, 16, v{vB2}")
    e(f" v_add_f32 v{vBa}, v{vBa}, v{vB2}")
    e(f" v_add_f32 v{vBb}, v{vBb}, v{vB2}")
    rnd2(vBa, vBb, vT)
    vWt2 = 96; vY = 224; vAl, vAh = 78, 79; vAop = 32
    if tr:
        e("; ---- 8x8 in-lane transposes: v[96:223] = wo slice as MFMA B operands (8 rows of one column per lane)")
        e(f" s_mov_b32 s{sT0}, 0x05040100")
        e(f" s_mov_b32 s{sT1}, 0x07060302")
        for t in range(4):
            for a in range(4):
                for q in range(4):
                    lo, hi = vW + 4*(8*t+2*a) + q, vW + 4*(8*t+2*a+1) + q
                    e(f" v_perm_b32 v{vWt2+32*t+8*q+a}, v{hi}, v{lo}, s{sT0}")
                    e(f" v_perm_b32 v{vWt2+32*t+8*q+4+a}, v{hi}, v{lo}, s{sT1}")
        e(f" v_and_b32 v{vt+3}, 60, v{vLane}")
        e(f" ds_write_b32 v{vt+3}, v{vZero} offset:{LDS_Z}")
        e(f" v_and_b32 v{vt}, 3, v{vLane}")
        e(f" v_lshlrev_b32 v{vt}, 8, v{vt}")
        e(f" v_and_b32 v{vt+1}, 48, v{vLane}")
        e(f" v_lshl_add_u32 v{vt}, v{vt+1}, 2, v{vt}")
        e(f" v_add_u32 v{vt}, {LDS_O}, v{vt}")
        e(f" v_mov_b32 v{vt+2}, {LDS_Z}")
        e(f" v_and_b32 v{vt+1}, 12, v{vLane}")
        e(f" v_cmp_eq_u32 vcc, 0, v{vt+1}")
        e(" s_nop 1")
        e(f" v_cndmask_b32 v{vAl}, v{vt+2}, v{vt}, vcc")
        e(f" v_cmp_eq_u32 vcc, 4, v{vt+1}")
        e(" s_nop 1")
        e(f" v_cndmask_b32 v{vAh}, v{vt+2}, v{vt}, vcc")
        if dry: e(f" s_call_b64 {sp(sRet)}, L_proj")
    e(f" s_mov_b32 s{sSpin}, 0x40000")
    e("L_chk:")
    e(f" global_load_dword v{vt}, v{vChk}, {sp(sDbgP)} sc1")
    e(" s_waitcnt vmcnt(0)")
    e(f" v_readfirstlane_b32 s{sT0}, v{vt}")
    e(f" s_cmp_ge_u32 s{sT0}, 64")
    e(" s_cbranch_scc1 L_chkd")
    e(f" s_sub_u32 s{sSpin}, s{sSpin}, 1")
    e(f" s_cmp_lg_u32 s{sSpin}, 0")
    e(" s_cbranch_scc1 L_chk")
    e("L_chkd:")
    if not ast: stamp(3)
    if stamps: e(" s_waitcnt lgkmcnt(0)")
    e(" s_barrier")
    e(f" ds_read_b128 {vr(vt,4)}, v{vZero} offset:{LDS_ML}")
    e(f" ds_read_b128 {vr(vt+4,4)}, v{vZero} offset:{LDS_ML+16}")
    e(" s_waitcnt lgkmcnt(0)")
    e(f" v_max3_f32 v{vt+8}, v{vt}, v{vt+2}, v{vt+4}")
    e(f" v_max_f32 v{vt+8}, v{vt+8}, v{vt+6}")
    for w in range(4): e(f" v_sub_f32 v{vt+2*w}, v{vt+2*w}, v{vt+8}")
    for w in range(4): e(f" v_mul_f32 v{vt+2*w}, s{sLog2e}, v{vt+2*w}")
    for w in range(4): e(f" v_exp_f32 v{vt+2*w}, v{vt+2*w}")
    e(f" v_mul_f32 v{vt+9}, v{vt}, v{vt+1}")
    for w in range(1, 4): e(f" v_fmac_f32 v{vt+9}, v{vt+2*w}, v{vt+2*w+1}")
    e(f" v_rcp_f32 v{vt+10}, v{vt+9}")
    e(f" s_cmp_lg_u32 s{sW}, {99 if 'mlst' in skip else 0}")
    e(" s_cbranch_scc1 L_noml")
    e(f" v_and_b32 v{vt+8}, -2, v{vt+8}")
    e(f" v_and_b32 v{vt+9}, -2, v{vt+9}")
    e(f" s_lshl_b32 s{sT0}, s{sHs}, {mlstr}")
    e(f" v_add_u32 v{vt+11}, s{sT0}, v{vPm}")
    e(" s_mov_b64 exec, 1")
    e(f" global_store_dwordx2 v{vt+11}, {vr(vt+8,2)}, {sp(sWs)} {mlsf}")
    e(" s_mov_b64 exec, -1")
    e("L_noml:")
    for w in range(4): e(f" v_mul_f32 v{vG+w}, v{vt+2*w}, v{vt+10}")
    e(" s_barrier")
    def proj():
        for t in range(4): e(f" ds_read_b128 {vr(vAop+4*t,4)}, v{vAl} offset:{16*t}")
        for t in range(4): e(f" ds_read_b128 {vr(vAop+16+4*t,4)}, v{vAh} offset:{16*t}")
        for t in range(4):
            e(f" s_waitcnt lgkmcnt({7-t})")
            for j in range(4):
                c = "0" if t == 0 else vr(vY+4*j, 4)
                e(f" v_mfma_f32_16x16x32_bf16 {vr(vY+4*j,4)}, {vr(vAop+4*t,4)}, {vr(vWt2+32*t+4*j,4)}, {c}")
        e(" s_waitcnt lgkmcnt(0)")
        def fin(j):
            return [f" v_mul_f32 v{vAcc+j}, v{vG}, v{vY+4*j}"] + [f" v_fmac_f32 v{vAcc+j}, v{vG+i}, v{vY+4*j+i}" for i in range(1, 4)] + [f" v_and_b32 v{vAcc+j}, -2, v{vAcc+j}"]
        for j in range(4):
            for t in range(4):
                e(f" v_mfma_f32_16x16x32_bf16 {vr(vY+4*j,4)}, {vr(vAop+16+4*t,4)}, {vr(vWt2+32*t+4*(j+4),4)}, {vr(vY+4*j,4)}")
                if j == 3 and t < 2:
                    for x in fin(t): e(x)
        for x in fin(2): e(x)
        e(" s_nop 2")
        for x in fin(3): e(x)
    if tr:
        if stamps and not ast:
            stamp(4)
            e(" s_waitcnt lgkmcnt(0)")
        if onepoll:
            e(f" s_cmp_lg_u32 s{sW}, 0")
            e(" s_cbranch_scc1 L_np0")
        if 'poll' not in skip: e(f" global_load_dwordx2 {vr(vMl,2)}, v{vPm}, {sp(sWs)} {mlld}")
        e("L_np0:")
        if dry: e(f" s_call_b64 {sp(sRet)}, L_proj")
        else: proj()
    else:
        for w in range(4): e(f" ds_read_b64 {vr(vXf+2*w,2)}, v{vLdsR} offset:{LDS_O + 512*w}")
        if onepoll:
            e(f" s_cmp_lg_u32 s{sW}, 0")
            e(" s_cbranch_scc1 L_np0")
        if 'poll' not in skip: e(f" global_load_dwordx2 {vr(vMl,2)}, v{vPm}, {sp(sWs)} {mlld}")
        e("L_np0:")
        e(" s_waitcnt lgkmcnt(0)")
        if not ast: stamp(4)
        e(f" v_mul_f32 v{vPP0}, v{vG}, v{vXf}")
        e(f" v_mul_f32 v{vPP1}, v{vG}, v{vXf+1}")
        for w in range(1, 4):
            e(f" v_fmac_f32 v{vPP0}, v{vG+w}, v{vXf+2*w}")
            e(f" v_fmac_f32 v{vPP1}, v{vG+w}, v{vXf+2*w+1}")
        e(f" v_cvt_pk_bf16_f32 v{vPP0}, v{vPP0}, v{vPP0}")
        e(f" v_cvt_pk_bf16_f32 v{vPP1}, v{vPP1}, v{vPP1}")
        e(f" s_call_b64 {sp(sRet)}, L_gemv")
        for j in range(4): e(f" v_and_b32 v{vAcc+j}, -2, v{vAcc+j}")
    e(" s_mov_b32 exec_hi, 0")
    if 'yst' not in skip: e(f" global_store_dwordx4 v{vOut}, {vr(vAcc,4)}, {sp(sWs)} {ysf}")
    e(" s_mov_b64 exec, -1")
    if not ast: stamp(5)
    if 'poll' in skip:
        if onepoll and help: e(" s_barrier")
        e(" s_branch L_got")
    e(f" s_mov_b32 s{sSpin}, 0x40000")
    if onepoll:
        e(f" s_cmp_lg_u32 s{sW}, 0")
        e(" s_cbranch_scc1 L_np1")
    e(" s_waitcnt vmcnt(1)")
    e("L_poll1:")
    e(f" v_max_u32 v{vt+4}, v{vMl}, v{vMl+1}")
    e(f" v_cmp_eq_u32 vcc, -1, v{vt+4}")
    e(" s_cbranch_vccz L_got1")
    e(f" s_sub_u32 s{sSpin}, s{sSpin}, 1")
    e(f" s_cmp_eq_u32 s{sSpin}, 0")
    e(" s_cbranch_scc1 L_got1")
    e(" s_mov_b64 exec, vcc")
    if sleep1: e(f" s_sleep {sleep1}")
    e(f" global_load_dwordx2 {vr(vMl,2)}, v{vPm}, {sp(sWs)} {mlld}")
    e(" s_waitcnt vmcnt(0)")
    e(" s_branch L_poll1")
    e("L_got1:")
    e(" s_mov_b64 exec, -1")
    if onepoll:
        e(f" ds_write_b64 v{vLdsR}, {vr(vMl,2)} offset:{LDS_Q}")
        e(" s_waitcnt lgkmcnt(0)")
        e("L_np1:")
        e(" s_barrier")
    e(f" global_load_dwordx2 {vr(vt,2)}, v{vPy}, {sp(sWs)} {yld}")
    if onepoll:
        e(f" ds_read_b64 {vr(vMl,2)}, v{vLdsR} offset:{LDS_Q}")
        e(" s_waitcnt lgkmcnt(0)")
    e(" s_nop 1")
    e(f" v_sub_f32_dpp v{vWt}, v{vMl}, v{vMl} quad_perm:[1,0,3,2] {DA}")
    e(f" v_mov_b32_dpp v{vWt+1}, v{vMl+1} quad_perm:[1,0,3,2] {DA}")
    e(f" v_mul_f32 v{vWt}, s{sLog2e}, v{vWt}")
    e(f" v_exp_f32 v{vWt}, v{vWt}")
    e(f" s_mov_b32 s{sSpin}, 0x40000")
    e(f" v_fma_f32 v{vWt}, v{vWt}, v{vWt+1}, v{vMl+1}")
    e(f" v_rcp_f32 v{vWt}, v{vWt}")
    e(" s_nop 0")
    e(f" v_mul_f32 v{vWt}, v{vWt}, v{vMl+1}")
    e("L_poll:")
    e(" s_waitcnt vmcnt(0)")
    e(f" v_max_u32 v{vt+4}, v{vt}, v{vt+1}")
    e(f" v_cmp_eq_u32 vcc, -1, v{vt+4}")
    e(" s_cbranch_vccz L_got")
    e(f" s_sub_u32 s{sSpin}, s{sSpin}, 1")
    e(f" s_cmp_eq_u32 s{sSpin}, 0")
    e(" s_cbranch_scc1 L_got")
    e(" s_mov_b64 exec, vcc")
    if sleep: e(f" s_sleep {sleep}")
    e(f" global_load_dwordx2 {vr(vt,2)}, v{vPy}, {sp(sWs)} {yld}")
    e(" s_branch L_poll")
    e("L_got:")
    e(" s_mov_b64 exec, -1")
    if not ast: stamp(6)
    e(f" v_mul_f32 v{vt}, v{vt}, v{vWt}")
    e(f" v_mul_f32 v{vt+1}, v{vt+1}, v{vWt}")
    wave_reduce("v_add_f32", [vt, vt+1])
    rnd2(vt, vt+1, vT)
    e(f" v_add_f32 v{vt}, v{vt}, v{vXa}")
    e(f" v_add_f32 v{vt+1}, v{vt+1}, v{vXb}")
    rnd2(vt, vt+1, vT)
    e(f" v_add_f32 v{vt}, v{vt}, v{vBa}")
    e(f" v_add_f32 v{vt+1}, v{vt+1}, v{vBb}")
    e(f" v_cvt_pk_bf16_f32 v{vt}, v{vt}, v{vt+1}")
    e(f" v_mov_b32 v{vt+2}, s{sCol}")
    e(" s_mov_b32 exec_lo, 0\n s_mov_b32 exec_hi, 0x80000000")
    e(f" global_store_dword v{vt+2}, v{vt}, {sp(sOutP)} {osf}")
    if stamps:
        e(" s_waitcnt vmcnt(0)")
        stamp(7)
        write_stamps("aux")
    e("L_end:\n s_endpgm")

    e("L_gemv:")
    def mkG(i):
        a = vA0 if i % 2 == 0 else vA1
        src = vPP0 if i % 2 == 0 else vPP1
        for r in range(4):
            e(f" v_and_b32_dpp v{a+r}, v{src}, v{vM+r} row_newbcast:{i>>1} {DA}")
    e(" s_nop 0")
    mkG(0); mkG(1)
    for i in range(32):
        a = vA0 if i % 2 == 0 else vA1
        c = "0" if i == 0 else vr(vAcc, 4)
        if i % 8 == 0 and i < 24: e(f" s_waitcnt vmcnt({NX + 24 - i})")
        if i % 2 == 0 and i >= 24: e(f" s_waitcnt vmcnt({NX + 30 - i})")
        e(f" v_mfma_f32_16x16x32_bf16 {vr(vAcc,4)}, {vr(a,4)}, {vr(vW+4*i,4)}, {c}")
        if i + 2 < 32: mkG(i + 2)
        elif i == 30: e(" s_nop 0")
    e(" s_nop 7")
    e(f" s_setpc_b64 {sp(sRet)}")
    if tr and dry:
        e("L_proj:")
        proj()
        e(f" s_setpc_b64 {sp(sRet)}")
    e("L_codeend:")
    e(f'.section .rodata,"a"\n.p2align 6\n.amdhsa_kernel {kname}')
    e(f"  .amdhsa_next_free_vgpr 256\n  .amdhsa_next_free_sgpr 102\n  .amdhsa_accum_offset 256")
    e("  .amdhsa_group_segment_fixed_size 0\n  .amdhsa_kernarg_size 104\n  .amdhsa_user_sgpr_count 2")
    e("  .amdhsa_user_sgpr_kernarg_segment_ptr 1\n  .amdhsa_system_sgpr_workgroup_id_x 1")
    e("  .amdhsa_float_denorm_mode_32 3")
    e(".end_amdhsa_kernel")
    return "\n".join(L) + "\n"

if __name__ == "__main__":
    if sys.argv[1].endswith(".json"):
        for name, kw in json.load(open(sys.argv[1])).items():
            open(f"k/{name}.s", "w").write(gen(**kw))
    else:
        kw = json.loads(sys.argv[2]) if len(sys.argv) > 2 else {}
        open(sys.argv[1], "w").write(gen(**kw))
```

```python
import sys, struct, json

KNAME = "parallel_sum__gqa_block_cached__mixer_token_mlp__decode_kernel"
def f2u(x): return struct.unpack("<I", struct.pack("<f", x))[0]
def hx(x): return "0x%08x" % (x & 0xffffffff)
LOG2E = 1.4426950408889634
C1 = -2.0 * LOG2E * 0.7978845608028654
C3 = C1 * 0.044715
HEADER = open("parallel_sum__gqa_block_cached__mixer_token_mlp__decode.s.ref").read().split("; Override launch")[0]

NOTES = """;
"""

def gen(NP=7, W=4, WB=5, WE=6, Wp=4, burst=4, wqpace=4, lnat=8, thr=(88, 98), kthr=8, gain=5, bias=163, first=54,
        cstep=8, last=6, hor=12, tlo=16, thi=124, sleep1=0,
        m=(35, 800, 1067, 922, 66, 198, 1203, 931), mw=(498, 241), pv=(419, 8, 2092), rv=(242, 464),
        tv=(218, 2148, 3946, 963, 741), kname=KNAME):
    L = []; e = L.append
    T, D = 32, 7
    assert W < WB <= WE <= D - 1
    vs = list(mw) + list(pv) + list(rv) + list(tv); rank = 0
    for bit in range(12):
        p = next((i for i, v in enumerate(vs) if v >> bit & 1), None)
        if p is None: continue
        pvv = vs.pop(p); vs = [v ^ pvv if v >> bit & 1 else v for v in vs]; rank += 1
    assert rank == 12 and all(x < 4096 for x in list(m) + list(mw) + list(pv) + list(rv) + list(tv))
    vT, vMx, vSc, vLdsW, vO16, vLp, vAd, vTl = 0, 1, 2, 3, 4, 5, 6, 7
    vM = 8; vQ = 12; vP = 16; vu = 24; vR0, vR1, vs0, vs1 = 28, 29, 30, 31
    vAcc = 12; vA0, vA1 = 16, 20; vL, vPP0, vPP1, vSn = 24, 25, 26, 27
    vK = 32
    vMy, vPeer, vPg, vPr = 64, 65, 66, 68
    assert vK + 32 * NP <= 256
    vLane, vO0 = 30, 31
    vSw = 4; c0 = 16; vt = 32; vAop = 32
    vX = 48; vXo, vXc, vB2 = 52, 53, 54; vXf = 56
    vLdsR, vOut, vPy, vPm, vBa, vBb, vXa, vXb, vZero, vHa, vHb, vWq, vWo, vChk, vAl, vAh = range(64, 80)
    vG = 80; vMl = 84; vWt = 86; vYs = 88; vMo = 90; vSink = 96; vWT = 96; vW = 128; vY = 224
    sX, sWs = 4, 6
    sWoP, sW1P, sB1P, sW2P, sB2P, sOutP, sDbgP, sVP = 8, 12, 14, 16, 18, 20, 22, 26
    rK, rWq, rWo, rW1, rB1, rW2 = 32, 40, 44, 48, 52, 56
    sW, sB, sH, sHs, sOff, sBase, sCnt, sPos = 60, 61, 62, 63, 64, 65, 66, 67
    sMx, sScale, sLog2e, sT0, sT1, sT2, sT3 = 68, 69, 70, 71, 72, 73, 74
    sM1, sR1, sCol, sReg, sW8, sRet, sC3, sSpin = 75, 76, 77, 78, 79, 80, 83, 84
    sProg, sLate, sThr, sIdx, sAd = 28, 29, 85, 48, 51
    sNext, sFresh, sT0x, sIsC, sOwn, sNow, sMsk = 36, 37, 38, 39, 28, 29, 30
    def srd(r): return f"s[{r}:{r+3}]"
    def sp(r): return f"s[{r}:{r+1}]"
    def vr(r, n): return f"v[{r}:{r+n-1}]"
    LDS_Q, LDS_O, LDS_ML, LDS_Z, LDS_SC = 0, 2048, 8192, 8320, 8448
    LDS_SIZE = LDS_SC + 8192 + 64
    OROW = 272
    WS_ML = 512 * 1024; WS_F = WS_ML + 65536; WS_R = WS_F + 8192
    PEND = 1 + (T - NP) + T
    SPIN = 0x40000
    DA = "row_mask:0xf bank_mask:0xf"

    def wave_reduce(op, regs, quads=True):
        steps = ["quad_perm:[1,0,3,2] " + DA, "quad_perm:[2,3,0,1] " + DA] if quads else []
        steps += ["row_half_mirror " + DA, "row_mirror " + DA,
                  "row_bcast:15 row_mask:0xa bank_mask:0xf", "row_bcast:31 row_mask:0xc bank_mask:0xf"]
        for st in steps:
            e(f" s_nop {1 if len(regs) == 1 else 0}")
            for r in regs: e(f" {op}_dpp v{r}, v{r}, v{r} {st}")
    def rnd2(a, b, t):
        e(f" v_cvt_pk_bf16_f32 v{t}, v{a}, v{b}")
        e(f" v_lshlrev_b32 v{a}, 16, v{t}")
        e(f" v_and_b32 v{b}, 0xffff0000, v{t}")
    def rnd1(a):
        e(f" v_cvt_pk_bf16_f32 v{a}, v{a}, v{a}")
        e(f" v_and_b32 v{a}, 0xffff0000, v{a}")
    def ln_stats(sm, sr):
        for j in range(4): e(f" v_add_f32 v{vt+j}, v{vXf+2*j}, v{vXf+2*j+1}")
        e(f" v_add_f32 v{vt}, v{vt}, v{vt+1}")
        e(f" v_add_f32 v{vt+2}, v{vt+2}, v{vt+3}")
        e(f" v_add_f32 v{vt}, v{vt}, v{vt+2}")
        wave_reduce("v_add_f32", [vt])
        e(f" v_mul_f32 v{vt}, {hx(f2u(1/512))}, v{vt}")
        e(" s_nop 0")
        e(f" v_readlane_b32 s{sT0}, v{vt}, 63")
        e(f" v_cvt_pk_bf16_f32 v{vt+9}, v{vt}, v{vt}")
        e(f" v_and_b32 v{vt+9}, 0xffff0000, v{vt+9}")
        for j in range(8): e(f" v_subrev_f32 v{vt+1+j}, s{sT0}, v{vXf+j}")
        e(f" v_readlane_b32 s{sm}, v{vt+9}, 63")
        e(f" v_mul_f32 v{vt}, v{vt+1}, v{vt+1}")
        for j in range(1, 8): e(f" v_fmac_f32 v{vt}, v{vt+1+j}, v{vt+1+j}")
        wave_reduce("v_add_f32", [vt])
        e(f" v_mul_f32 v{vt}, {hx(f2u(1/512))}, v{vt}")
        rnd1(vt)
        e(f" v_add_f32 v{vt}, {hx(f2u(1e-5))}, v{vt}")
        rnd1(vt)
        e(f" v_sqrt_f32 v{vt}, v{vt}")
        e(" s_nop 0")
        rnd1(vt)
        e(f" v_rcp_f32 v{vt}, v{vt}")
        e(" s_nop 1")
        e(f" v_readlane_b32 s{sr}, v{vt}, 63")
        e(" s_nop 1")
    def ln_apply(a, b, sm, sr):
        e(f" v_subrev_f32 v{a}, s{sm}, v{a}")
        e(f" v_subrev_f32 v{b}, s{sm}, v{b}")
        rnd2(a, b, vT)
        e(f" v_mul_f32 v{a}, s{sr}, v{a}")
        e(f" v_mul_f32 v{b}, s{sr}, v{b}")
        rnd2(a, b, vT)
    def masks(t):
        e("; vM[r] keeps bf16 slot (lane & 15) of an MFMA A row; vLdsW = slot of a 16x16 result (rows 0..7) in LDS")
        e(f" v_and_b32 v{t}, 15, v{vLane}")
        e(f" v_and_b32 v{t+1}, 1, v{vLane}")
        e(f" v_lshlrev_b32 v{t+1}, 4, v{t+1}")
        e(f" v_mov_b32 v{t+2}, 0xffff")
        e(f" v_lshlrev_b32 v{t+2}, v{t+1}, v{t+2}")
        e(f" v_lshrrev_b32 v{t+3}, 1, v{t}")
        for r in range(4):
            e(f" v_cmp_eq_u32 vcc, {r}, v{t+3}")
            e(" s_nop 1")
            e(f" v_cndmask_b32 v{vM+r}, 0, v{t+2}, vcc")
        e(f" v_lshlrev_b32 v{vLdsW}, 5, v{t}")
        e(f" v_and_b32 v{t+1}, 16, v{vLane}")
        e(f" v_or_b32 v{vLdsW}, v{vLdsW}, v{t+1}")
        e(f" v_and_b32 v{t+1}, 32, v{vLane}")
        e(f" v_lshl_or_b32 v{vLdsW}, v{t+1}, 7, v{vLdsW}")
        e(f" s_lshl_b32 s{sT0}, s{sW}, 9")
        e(f" v_add_u32 v{vLdsW}, s{sT0}, v{vLdsW}")
    def slot_thr(dst):
        e(f" s_getreg_b32 s{dst}, hwreg(HW_REG_XCC_ID, 0, 1)")
        e(f" s_mul_i32 s{dst}, s{dst}, {thr[1] - thr[0]}")
        e(f" s_add_u32 s{dst}, s{dst}, {thr[0]}")
    def addr(n):
        x = 0
        for i in range(3):
            if n >> i & 1: x ^= pv[i] << 8
        if x:
            e(f" s_xor_b32 s{sAd}, s{sOff}, {hx(x)}")
            e(f" v_xor_b32 v{vAd}, s{sAd}, v{vLp}")
        else:
            e(f" v_xor_b32 v{vAd}, s{sOff}, v{vLp}")
    def ld(reg):
        e(f" buffer_load_dwordx4 {vr(reg,4)}, v{vAd}, {srd(rK)}, 0 offen nt")
    def next_tile():
        e(f" s_add_u32 s{sIdx}, s{sIdx}, 1")
        e(f" v_readlane_b32 s{sPos}, v{vTl}, s{sIdx}")
        e(f" s_xor_b32 s{sOff}, s{sBase}, s{sPos}")
    def scores():
        for hi in range(2):
            for t in range(2):
                for k in range(2):
                    s_ = vP + 4*t + 2*hi + k
                    e(f" v_add_f32_dpp v{vu+2*t+k}, v{s_}, v{s_} row_ror:8 row_mask:0xf bank_mask:{'0xc' if hi else '0x3'}")
        e(f" v_add_f32_dpp v{vR0}, v{vu}, v{vu} row_half_mirror row_mask:0xf bank_mask:0x5")
        e(f" v_add_f32_dpp v{vR1}, v{vu+2}, v{vu+2} row_half_mirror row_mask:0xf bank_mask:0x5")
        e(" s_nop 0")
        e(f" v_add_f32_dpp v{vR0}, v{vu+1}, v{vu+1} row_half_mirror row_mask:0xf bank_mask:0xa")
        e(f" v_add_f32_dpp v{vR1}, v{vu+3}, v{vu+3} row_half_mirror row_mask:0xf bank_mask:0xa")
        for st in ("quad_perm:[1,0,3,2]", "quad_perm:[2,3,0,1]"):
            e(" s_nop 0")
            e(f" v_add_f32_dpp v{vR0}, v{vR0}, v{vR0} {st} {DA}")
            e(f" v_add_f32_dpp v{vR1}, v{vR1}, v{vR1} {st} {DA}")
        rnd2(vR0, vR1, vT)
        e(f" v_mul_f32 v{vR0}, s{sScale}, v{vR0}")
        e(f" v_mul_f32 v{vR1}, s{sScale}, v{vR1}")
        rnd2(vR0, vR1, vT)
        e(f" ds_write_b32 v{vSc}, v{vT} offset:{LDS_SC}")
        e(f" v_max3_f32 v{vMx}, v{vR0}, v{vR1}, v{vMx}")
        e(f" v_add_u32 v{vSc}, 64, v{vSc}")
    NF = 2
    def cntw(n, w): return w + (2 if 0 <= n - NF < w else 0)
    def balance_eval(off):
        e("; load balance: how many of the 128 streaming waves of this slot were as far one trip ago; late waves get one more load in flight")
        e(f" v_cmp_le_u32 s[24:25], s{sProg}, v{vPr}")
        e(f" v_cmp_le_u32 s[30:31], s{sProg}, v{vPr+1}")
        e(f" v_cmp_le_u32 s[36:37], s{sProg}, v{vPr+2}")
        e(f" v_cmp_le_u32 s[38:39], s{sProg}, v{vPr+3}")
        e(f" v_readlane_b32 s{sThr}, v{vPr}, 32")
        e(" s_mov_b32 s25, s30")
        e(" s_mov_b32 s37, s38")
        e(f" s_bcnt1_i32_b64 s{sLate}, s[24:25]")
        e(f" s_bcnt1_i32_b64 s{sT0}, s[36:37]")
        e(f" s_add_u32 s{sLate}, s{sLate}, s{sT0}")
        e(f" s_add_u32 s{sProg}, s{sProg}, 1")
        if off: e(f" s_add_u32 s{sLate}, s{sLate}, {off}")
        e(f" s_cmp_ge_u32 s{sLate}, s{sThr}")
        e(" s_cselect_b64 vcc, 0, -1")
    def balance_issue():
        e(f" v_mov_b32 v{vPg}, s{sProg}")
        e(f" global_load_dwordx4 {vr(vPr,4)}, v{vPeer}, {sp(sWs)} nt")
        e(" s_mov_b64 exec, 1")
        e(f" global_store_dword v{vMy}, v{vPg}, {sp(sWs)}")
        e(" s_mov_b64 exec, -1")
    def waits(lab, n, end):
        if end:
            e(f" s_cmp_le_u32 s{sCnt}, 1")
            e(f" s_waitcnt vmcnt({cntw(n, WE)})")
            e(f" s_cbranch_scc1 {lab}")
        e(f" s_waitcnt vmcnt({cntw(n, WB)})")
        e(f" s_cbranch_vccz {lab}")
        e(f" s_waitcnt vmcnt({cntw(n, W)})")
        e(f"{lab}:")

    e(HEADER.rstrip())
    e(f"; @launch grid=(256,1,1) block=(512,1,1) lds={LDS_SIZE}")
    e(NOTES.rstrip())
    e('.amdgcn_target "amdgcn-amd-amdhsa--gfx950"')
    e(f".text\n.globl {kname}\n.p2align 8\n.type {kname},@function\n{kname}:")
    e(" s_cmpk_ge_u32 s2, 256\n s_cbranch_scc1 L_end")
    e(f" s_load_dwordx2 {sp(rK)}, s[0:1], 8")
    e(f" s_load_dwordx2 {sp(rWq)}, s[0:1], 24")
    e(f" s_load_dwordx2 {sp(sX)}, s[0:1], 0")
    e(f" s_load_dwordx2 {sp(sVP)}, s[0:1], 16")
    e(" s_load_dwordx16 s[8:23], s[0:1], 32")
    e(f" s_load_dwordx2 {sp(sWs)}, s[0:1], 96")
    e(" v_lshrrev_b32 v1, 6, v0")
    e(f" v_and_b32 v{vLane}, 63, v0")
    e(f" v_readfirstlane_b32 s{sW8}, v1")
    e(f" v_lshlrev_b32 v{vO0}, 4, v{vLane}")
    e(f" s_bfe_u32 s{sReg}, s2, 0x10003")
    e(f" s_and_b32 s{sT0}, s2, 7")
    e(f" s_lshl1_add_u32 s{sReg}, s{sT0}, s{sReg}")
    e(f" s_and_b32 s{sT0}, s2, 0xf0")
    e(f" s_or_b32 s{sReg}, s{sReg}, s{sT0}")
    e(f" s_and_b32 s{sW}, s{sW8}, 3")
    e(f" s_cmp_ge_u32 s{sW8}, 4")
    e(" s_cbranch_scc1 L_aux")

    e(" s_setprio 2")
    e(f" s_lshl_b32 s{sBase}, s{sReg}, 20")
    for src, vec in (("s2", m), (f"s{sW8}", mw)):
        for i, x in enumerate(vec):
            e(f" s_bitcmp1_b32 {src}, {i}")
            e(f" s_cselect_b32 s{sT0}, {hx(x << 8)}, 0")
            e(f" s_xor_b32 s{sBase}, s{sBase}, s{sT0}")
    e(f" v_and_b32 v{vLp}, 0xf0, v{vO0}")
    for i in range(2):
        e(f" v_bfe_i32 v{vAd}, v{vLane}, {4+i}, 1")
        e(f" v_and_b32 v{vAd}, {hx(rv[i] << 8)}, v{vAd}")
        e(f" v_xor_b32 v{vLp}, v{vLp}, v{vAd}")
    e(f" s_mov_b32 s{sOff}, s{sBase}")
    e(f" s_mov_b32 s{rK+2}, 0x10000000\n s_mov_b32 s{rK+3}, 0x00020000")
    e(" s_waitcnt lgkmcnt(0)")
    cnt = 0
    for b in range(NP):
        for n in range(8):
            addr(n)
            if Wp < cnt < 8 * NP - burst: e(f" s_waitcnt vmcnt({Wp})")
            ld(vK + 32*b + 4*n)
            cnt += 1
            if cnt == Wp + 1:
                e("; lane t of vTl = offset of tile t & 31")
                e(f" v_mov_b32 v{vTl}, 0")
                for i in range(5):
                    e(f" v_bfe_i32 v{vP}, v{vLane}, {i}, 1")
                    e(f" v_and_b32 v{vP}, {hx(tv[i] << 8)}, v{vP}")
                    e(f" v_xor_b32 v{vTl}, v{vTl}, v{vP}")
                e(f" s_mov_b32 s{sIdx}, 0")
                masks(vP)
                e(f" v_lshrrev_b32 v{vLdsW}, 1, v{vLdsW}")
                e(f" s_mul_i32 s{sT0}, s{sW}, {OROW - 256}")
                e(f" v_add_u32 v{vLdsW}, s{sT0}, v{vLdsW}")
                e(f" v_mov_b32 v{vO16}, v{vO0}")
                e(f" s_mov_b32 s{sScale}, {hx(f2u(128 ** -0.5))}")
                e(f" s_mov_b32 s{sLog2e}, {hx(f2u(LOG2E))}")
                e(f" v_mov_b32 v{vMx}, 0xff800000")
                e(f" s_lshl_b32 s{sT0}, s{sW}, 11")
                e(f" v_and_b32 v{vSc}, 60, v{vLane}")
                e(f" v_add_u32 v{vSc}, s{sT0}, v{vSc}")
                e(f" v_and_b32 v{vT}, 15, v{vLane}")
                e(f" v_lshlrev_b32 v{vT}, 5, v{vT}")
                e(f" s_mov_b32 s{sCnt}, {T - NP}")
        next_tile()
    e(" s_barrier")
    for hh in range(2):
        for w in range(4): e(f" ds_read_b128 {vr(vP+4*w,4)}, v{vT} offset:{LDS_Q+512*w+16*hh}")
        e(" s_waitcnt lgkmcnt(0)")
        for j in range(4): e(f" v_add_f32 v{vP+j}, v{vP+j}, v{vP+4+j}")
        for j in range(4): e(f" v_add_f32 v{vP+8+j}, v{vP+8+j}, v{vP+12+j}")
        for j in range(4): e(f" v_add_f32 v{vP+j}, v{vP+j}, v{vP+8+j}")
        for j in range(2): e(f" v_cvt_pk_bf16_f32 v{vQ+2*hh+j}, v{vP+2*j}, v{vP+2*j+1}")
    for b in range(NP):
        kb = vK + 32 * b
        e(f" s_waitcnt vmcnt({8*(NP-1-b) + (D if b else 0)})")
        for r in range(4):
            for n in range(8):
                c = "0" if r == 0 else f"v{vP+n}"
                e(f" v_dot2_f32_bf16 v{vP+n}, v{kb+4*n+r}, v{vQ+r}, {c}")
        if b == 0:
            for n in range(D):
                addr(n); ld(vK + 4*n)
        scores()
    e(f" s_and_b32 s{sT0}, s2, 7")
    e(f" s_lshl_b32 s{sT0}, s{sT0}, 10")
    e(f" s_add_u32 s{sT0}, s{sT0}, {WS_F}")
    e(f" s_lshr_b32 s{sT1}, s2, 3")
    e(f" s_lshl2_add_u32 s{sT1}, s{sT1}, s{sW}")
    e(f" s_lshl2_add_u32 s{sT1}, s{sT1}, s{sT0}")
    e(f" v_mov_b32 v{vMy}, s{sT1}")
    e(f" v_min_u32 v{vPeer}, 512, v{vO16}")
    e(f" v_add_u32 v{vPeer}, s{sT0}, v{vPeer}")
    for j in range(4): e(f" v_mov_b32 v{vPr+j}, 0")
    e(f" v_writelane_b32 v{vPr}, 64, 32")
    e(f" s_mov_b32 s{sProg}, 1")
    e(" s_mov_b64 vcc, -1")
    e("L_kloop:")
    for n in range(8):
        if n == 8 - D:
            balance_eval(kthr)
            next_tile()
            e(f" s_sub_u32 s{sCnt}, s{sCnt}, 1")
            e(f" s_cmp_eq_u32 s{sCnt}, 0")
            e(f" s_cselect_b32 s{rK}, s{sVP}, s{rK}")
            e(f" s_cselect_b32 s{rK+1}, s{sVP+1}, s{rK+1}")
        addr((n + D) % 8)
        waits(f"L_k{n}", n, False)
        ld(vK + 4*((n + D) % 8))
        if n == NF - 1: balance_issue()
        for r in range(4):
            c = "0" if r == 0 else f"v{vP+n}"
            e(f" v_dot2_f32_bf16 v{vP+n}, v{vK+4*n+r}, v{vQ+r}, {c}")
    scores()
    e(f" s_cmp_lg_u32 s{sCnt}, 0")
    e(" s_cbranch_scc1 L_kloop")
    e(f" v_subrev_u32 v{vSc}, {64*T}, v{vSc}")
    e(f" v_mov_b32 v{vL}, 0")
    e(f" ds_read_b32 v{vSn}, v{vSc} offset:{LDS_SC}")
    for j in range(4): e(f" v_mov_b32 v{vAcc+j}, 0")
    wave_reduce("v_max_f32", [vMx], quads=False)
    e(f" s_mov_b32 s{sCnt}, {T}")
    e(f" v_readlane_b32 s{sMx}, v{vMx}, 63")
    e("; ---- V pass")
    e("L_vloop:")
    e(" s_waitcnt lgkmcnt(0)")
    e(f" v_lshlrev_b32 v{vR0}, 16, v{vSn}")
    e(f" v_and_b32 v{vR1}, 0xffff0000, v{vSn}")
    e(f" ds_read_b32 v{vSn}, v{vSc} offset:{LDS_SC+64}")
    e(f" v_subrev_f32 v{vR0}, s{sMx}, v{vR0}")
    e(f" v_subrev_f32 v{vR1}, s{sMx}, v{vR1}")
    e(f" v_mul_f32 v{vR0}, s{sLog2e}, v{vR0}")
    e(f" v_mul_f32 v{vR1}, s{sLog2e}, v{vR1}")
    e(f" v_exp_f32 v{vR0}, v{vR0}")
    e(f" v_exp_f32 v{vR1}, v{vR1}")
    e(f" v_add_u32 v{vSc}, 64, v{vSc}")
    e(f" v_cvt_pk_bf16_f32 v{vPP0}, v{vR0}, v{vR0}")
    e(f" v_cvt_pk_bf16_f32 v{vPP1}, v{vR1}, v{vR1}")
    e(f" v_add_f32 v{vL}, v{vL}, v{vR0}")
    e(f" v_add_f32 v{vL}, v{vL}, v{vR1}")
    for n in range(8):
        a = vA0 if n % 2 == 0 else vA1
        for r in range(4):
            e(f" v_and_b32_dpp v{a+r}, v{vPP0 if n < 4 else vPP1}, v{vM+r} row_newbcast:{4*(n&3)} {DA}")
        if n == 8 - D:
            balance_eval(0)
            next_tile()
            e(f" s_sub_u32 s{sCnt}, s{sCnt}, 1")
            e(f" s_cmp_eq_u32 s{sCnt}, 0")
            e(f" s_cselect_b32 s{rK+2}, 0, s{rK+2}")
            e(" s_cbranch_scc0 L_notlast")
            wave_reduce("v_add_f32", [vL], quads=False)
            e(f" v_mov_b32 v{vs0}, s{sMx}")
            e(f" v_readlane_b32 s{sT0}, v{vL}, 63")
            e(f" v_mov_b32 v{vT}, s{sW}")
            e(f" v_lshlrev_b32 v{vT}, 3, v{vT}")
            e(f" v_mov_b32 v{vs1}, s{sT0}")
            e(f" ds_write_b64 v{vT}, {vr(vs0,2)} offset:{LDS_ML}")
            e(" s_waitcnt lgkmcnt(0)")
            e(" s_barrier")
            e("L_notlast:")
        addr((n + D) % 8)
        waits(f"L_v{n}", n, True)
        ld(vK + 4*((n + D) % 8))
        e(f" v_mfma_f32_16x16x32_bf16 {vr(vAcc,4)}, {vr(a,4)}, {vr(vK+4*n,4)}, {vr(vAcc,4)}")
        if n == NF - 1: balance_issue()
    e(f" s_cmp_lg_u32 s{sCnt}, 0")
    e(" s_cbranch_scc1 L_vloop")
    e(" s_nop 5")
    e(f" v_cvt_pk_bf16_f32 v{vR0}, v{vAcc}, v{vAcc+1}")
    e(f" v_cvt_pk_bf16_f32 v{vR1}, v{vAcc+2}, v{vAcc+3}")
    e(f" ds_write_b64 v{vLdsW}, {vr(vR0,2)} offset:{LDS_O}")
    e(" s_waitcnt lgkmcnt(0)")
    e(" s_barrier")
    e(" s_endpgm")

    e("L_aux:")
    e(f" s_lshr_b32 s{sB}, s{sReg}, 6")
    e(f" s_and_b32 s{sHs}, s{sReg}, 63")
    e(f" s_lshr_b32 s{sH}, s{sHs}, 1")
    e(f" s_mov_b32 s{rWq+2}, 0x400000\n s_mov_b32 s{rWq+3}, 0x00020000")
    e(f" v_and_b32 v{vt+3}, 0x300, v{vO0}               ; (l >> 4) * 256")
    e(f" v_and_b32 v{vt+2}, 0xf0, v{vO0}                ; (l & 15) * 16")
    e(f" v_lshl_or_b32 v{vWq}, v{vt+3}, 10, v{vt+2}")
    e(f" v_lshl_or_b32 v{vWo}, v{vt+3}, 7, v{vt+2}")
    e(f" s_lshl_b32 s{sT1}, s{sB}, 10")
    e(f" v_add_u32 v{vt}, s{sT1}, v{vO0}")
    e(f" s_lshl_b32 s{sT2}, s{sW}, 8")
    e(f" s_add_u32 s{sT1}, s{sT1}, s{sT2}")
    e(f" s_and_b32 s{sT3}, s{sReg}, 1")
    e(f" s_lshl1_add_u32 s{sT3}, s{sB}, s{sT3}")
    e(f" s_lshl_b32 s{sT2}, s{sT3}, 1")
    e(f" v_xor_b32 v{vt+1}, s{sT2}, v{vLane}")
    e(f" v_lshl_add_u32 v{vt+1}, v{vt+1}, 2, s{sT1}")
    e(f" s_lshl_b32 s{sBase}, s{sW}, 20")
    e(f" s_lshl_b32 s{sT1}, s{sH}, 8")
    e(f" s_add_u32 s{sBase}, s{sBase}, s{sT1}")
    e(f" s_lshl_b32 s{sT1}, s{sT3}, 15")
    e(f" s_add_u32 s{sBase}, s{sBase}, s{sT1}")
    e(f" s_lshl3_add_u32 s{sPos}, s{sH}, s{sT3}")
    e(f" s_lshl2_add_u32 s{sPos}, s{sPos}, s{sW}")
    e(f" s_lshl_b32 s{sPos}, s{sPos}, 12")
    e(f" v_add_u32 v{vt+14}, s{sPos}, v{vO0}")
    e(f" s_lshl_b32 s{sT0}, s{sB}, 17")
    e(f" s_lshl_b32 s{sT2}, s{sHs}, 8")
    e(f" s_add_u32 s{sT0}, s{sT0}, s{sT2}")
    e(f" v_lshl_or_b32 v{vt+9}, v{vt+3}, 6, v{vt+2}")
    e(f" v_add_u32 v{vt+9}, s{sT0}, v{vt+9}")
    e(f" v_add_u32 v{vt+13}, 0x10000, v{vt+9}")
    e(f" s_lshl_b32 s{sT0}, s{sReg}, 7")
    e(f" s_add_u32 s{sT0}, s{sT0}, {WS_ML}")
    e(f" v_mov_b32 v{vMo+2}, s{sT0}")
    for j in range(4): e(f" v_mov_b32 v{vt+4+j}, -1")
    e(" s_waitcnt lgkmcnt(0)")
    e(f" s_cmp_lg_u32 s{sW}, 0")
    e(" s_cbranch_scc1 L_nc")
    e(f" global_store_dwordx4 v{vt+9}, {vr(vt+4,4)}, {sp(sWs)} sc1")
    e(f" global_store_dwordx4 v{vt+13}, {vr(vt+4,4)}, {sp(sWs)} sc1")
    e(" s_mov_b64 exec, 1")
    e(f" global_store_dwordx2 v{vMo+2}, {vr(vt+4,2)}, {sp(sWs)} sc1")
    e(" s_mov_b64 exec, -1")
    e(" s_cmp_ge_u32 s2, 8")
    e(" s_cbranch_scc1 L_nc")
    e(f" s_lshl_b32 s{sT0}, s2, 10")
    e(f" s_add_u32 s{sT0}, s{sT0}, {WS_F}")
    e(f" v_add_u32 v{vSink+20}, s{sT0}, v{vO0}")
    for j in range(4): e(f" v_mov_b32 v{vSink+24+j}, 0")
    e(f" v_add_u32 v{vSink+21}, {WS_R - WS_F}, v{vSink+20}")
    slot_thr(sT0)
    e(f" v_writelane_b32 v{vSink+24}, s{sT0}, 32")
    e(f" global_store_dwordx4 v{vSink+20}, {vr(vSink+24,4)}, {sp(sWs)} sc1")
    e(" s_mov_b64 exec, 0xff")
    e(f" global_store_dwordx4 v{vSink+21}, {vr(vSink+24,4)}, {sp(sWs)} sc1")
    e(" s_mov_b64 exec, -1")
    e("L_nc:")
    e(f" global_load_dwordx4 {vr(vX,4)}, v{vt}, {sp(sX)}")
    e(f" global_load_dword v{vXo}, v{vt+1}, {sp(sX)}")
    def wq_loads(lo, hi):
        for i in range(lo, hi):
            e(f" s_xor_b32 s{sOff}, s{sBase}, {i*8192}")
            if i >= lnat: e(f" s_waitcnt vmcnt({wqpace-1})")
            e(f" buffer_load_dwordx4 {vr(vW+4*i,4)}, v{vWq}, {srd(rWq)}, s{sOff} offen")
            if i == 3:
                e("; wo goes to L2 now, together with wq")
                for n in range(4): e(f" global_load_dwordx4 {vr(vSink+4*n,4)}, v{vt+14}, {sp(sWoP)} offset:{1024*n}")
    wq_loads(0, lnat)
    e(f" s_lshl_b32 s{sT0}, s{sB}, 17")
    e(f" s_lshl_b32 s{sT1}, s{sW}, 15")
    e(f" s_add_u32 s{sT0}, s{sT0}, s{sT1}")
    e(f" s_lshl_b32 s{sT1}, s{sHs}, 8")
    e(f" s_add_u32 s{sT0}, s{sT0}, s{sT1}")
    e(f" v_and_b32 v{vOut}, 0x70, v{vO0}")
    e(f" v_and_b32 v{vt+3}, 16, v{vLane}")
    e(f" v_lshl_or_b32 v{vOut}, v{vt+3}, 3, v{vOut}")
    e(f" v_and_b32 v{vt+3}, 8, v{vLane}")
    e(f" v_lshl_or_b32 v{vOut}, v{vt+3}, 11, v{vOut}")
    e(f" v_add_u32 v{vOut}, s{sT0}, v{vOut}")
    e("; columns 64 (h & 7) + 16 (i & 3) + 8 (w >> 1) + 4 (i >> 2) + 2 (w & 1), +1")
    e(f" s_and_b32 s{sT0}, s{sH}, 7")
    e(f" s_lshl3_add_u32 s{sT0}, s{sB}, s{sT0}          ; 8 b + (h & 7)")
    e(f" s_lshr_b32 s{sT1}, s{sH}, 3")
    e(f" s_and_b32 s{sT2}, s{sHs}, 1")
    e(f" s_lshl1_add_u32 s{sT1}, s{sT1}, s{sT2}         ; i")
    e(f" s_and_b32 s{sT2}, s{sT1}, 3")
    e(f" s_lshl2_add_u32 s{sCol}, s{sT0}, s{sT2}")
    e(f" s_lshr_b32 s{sT2}, s{sW}, 1")
    e(f" s_lshl1_add_u32 s{sCol}, s{sCol}, s{sT2}")
    e(f" s_lshr_b32 s{sT2}, s{sT1}, 2")
    e(f" s_lshl1_add_u32 s{sCol}, s{sCol}, s{sT2}")
    e(f" s_and_b32 s{sT2}, s{sW}, 1")
    e(f" s_lshl1_add_u32 s{sCol}, s{sCol}, s{sT2}")
    e(f" s_lshl_b32 s{sCol}, s{sCol}, 2")
    e(f" s_lshl2_add_u32 s{sT0}, s{sT0}, s{sW}")
    e(f" s_lshl_b32 s{sT0}, s{sT0}, 12")
    e(f" s_lshl_b32 s{sT1}, s{sT1}, 5")
    e(f" s_add_u32 s{sT0}, s{sT0}, s{sT1}")
    e(f" v_lshrrev_b32 v{vPy}, 2, v{vLane}")
    e(f" v_lshlrev_b32 v{vPy}, 8, v{vPy}")
    e(f" v_and_b32 v{vt+3}, 3, v{vLane}")
    e(f" v_lshl_or_b32 v{vPy}, v{vt+3}, 3, v{vPy}")
    e(f" v_add_u32 v{vPy}, s{sT0}, v{vPy}")
    e(f" s_lshl_b32 s{sT1}, s{sB}, 13")
    e(f" s_add_u32 s{sT1}, s{sT1}, {WS_ML}")
    e(f" v_lshlrev_b32 v{vLdsR}, 3, v{vLane}")
    e(f" v_lshl_add_u32 v{vPm}, v{vLane}, 7, s{sT1}")
    e(f" v_mov_b32 v{vt+2}, s{sCol}")
    e(f" v_mov_b32 v{vZero}, 0")
    e(f" global_load_dword v{vXc}, v{vt+2}, {sp(sX)}")
    e(f" global_load_ushort v{vB2}, v{vZero}, {sp(sB2P)}")
    masks(vt + 10)
    e(f" s_mov_b32 s{sLog2e}, {hx(f2u(LOG2E))}")
    e(f" s_lshl_b32 s{sT0}, s{sB}, 6")
    e(f" v_mov_b32 v{vChk}, s{sT0}")
    e(f" s_waitcnt vmcnt({lnat + 6})")
    e(f" s_cmp_lg_u32 s{sW}, 0")
    e(" s_cbranch_scc1 L_nosig")
    e(f" v_mov_b32 v{vt+11}, 1")
    e(" s_mov_b64 exec, 1")
    e(f" global_atomic_add v{vChk}, v{vt+11}, {sp(sDbgP)} sc1")
    e(" s_mov_b64 exec, -1")
    e("L_nosig:")
    e(f" s_lshr_b32 s{sT1}, s2, 3")
    e(f" s_lshl2_add_u32 s{sT1}, s{sT1}, s{sW}")
    e(f" s_cmp_ge_u32 s{sT1}, 2")
    e(" s_cbranch_scc1 L_nowarm")
    e(" s_getpc_b64 s[24:25]")
    e("L_pc:")
    e(f" s_sub_u32 s24, s24, L_pc-{kname}")
    e(" s_subb_u32 s25, s25, 0")
    e(f" s_lshl_b32 s{sT0}, s{sW}, 13")
    e(f" v_lshl_add_u32 v{vt+12}, v{vLane}, 7, s{sT0}")
    e(f" v_min_u32 v{vt+12}, L_codeend-{kname}-4, v{vt+12}")
    e(f" global_load_dword v{vSink+16}, v{vt+12}, s[24:25]")
    e("L_nowarm:")
    e(f" s_cmp_lg_u32 s{sT1}, 7")
    e(" s_cbranch_scc1 L_nompf")
    e(f" v_lshlrev_b32 v{vt+12}, 7, v{vLane}")
    e(f" v_min_u32 v{vt+12}, 2748, v{vt+12}")
    for j, p in enumerate((sW1P, sB1P, sW2P)): e(f" global_load_dword v{vSink+28+j}, v{vt+12}, {sp(p)}")
    e("L_nompf:")
    for j in range(4):
        e(f" v_lshlrev_b32 v{vXf+2*j}, 16, v{vX+j}")
        e(f" v_and_b32 v{vXf+2*j+1}, 0xffff0000, v{vX+j}")
    ln_stats(sM1, sR1)
    e(f" v_lshlrev_b32 v{vPP0}, 16, v{vXo}")
    e(f" v_and_b32 v{vPP1}, 0xffff0000, v{vXo}")
    ln_apply(vPP0, vPP1, sM1, sR1)
    e(f" v_cvt_pk_bf16_f32 v{vPP0}, v{vPP0}, v{vPP0}")
    e(f" v_cvt_pk_bf16_f32 v{vPP1}, v{vPP1}, v{vPP1}")
    wq_loads(lnat, 32)
    def mkG(i):
        for r in range(4):
            e(f" v_and_b32_dpp v{(vA0 if i % 2 == 0 else vA1)+r}, v{vPP0 if i % 2 == 0 else vPP1}, v{vM+r} row_newbcast:{i>>1} {DA}")
    mkG(0); mkG(1)
    for i in range(32):
        if i == 0: e(f" s_waitcnt vmcnt({wqpace})")
        if i >= 32 - wqpace: e(f" s_waitcnt vmcnt({31 - i})")
        e(f" v_mfma_f32_16x16x32_bf16 {vr(vAcc,4)}, {vr(vA0 if i % 2 == 0 else vA1,4)}, {vr(vW+4*i,4)}, {'0' if i == 0 else vr(vAcc,4)}")
        if i + 2 < 32: mkG(i + 2)
    e(" s_nop 7")
    e(f" ds_write_b128 v{vLdsW}, {vr(vAcc,4)} offset:{LDS_Q}")
    e(" s_waitcnt lgkmcnt(0)")
    e(" s_barrier")
    for r, p, n in ((rWo, sWoP, 0x400000), (rW1, sW1P, 2752), (rB1, sB1P, 2752), (rW2, sW2P, 2752)):
        e(f" s_mov_b32 s{r}, s{p}\n s_mov_b32 s{r+1}, s{p+1}\n s_mov_b32 s{r+2}, {hx(n)}\n s_mov_b32 s{r+3}, 0x00020000")
    e(f" s_lshl3_add_u32 s{sT0}, s{sW}, s2")
    e(f" s_cmp_lt_u32 s{sT0}, 8")
    e(f" s_cselect_b32 s{sIsC}, 1, 0")
    slot_thr(sT0x)
    e(f" s_and_b32 s{sT2}, s2, 7")
    e(f" s_lshl_b32 s{sT0}, s{sT2}, 10")
    e(f" s_add_u32 s{sT0}, s{sT0}, {WS_F}")
    e(f" v_lshl_add_u32 v{c0}, v{vLane}, 3, s{sT0}")
    e(f" s_add_u32 s{sT1}, s{sT0}, 512")
    e(f" v_mov_b32 v{c0+1}, s{sT1}")
    e(f" s_mov_b32 s{sT1}, {WS_R}")
    e(f" v_and_b32 v{c0+2}, 7, v{vLane}")
    e(f" v_lshl_add_u32 v{c0+2}, v{c0+2}, 10, s{sT1}")
    e(f" s_add_u32 s{sT0}, s{sT0}, {WS_R - WS_F}")
    e(f" v_mov_b32 v{c0+3}, s{sT0}")
    e(f" s_lshl_b32 s{sMsk}, 1, s{sT2}")
    e(f" s_xor_b32 s{sMsk}, s{sMsk}, 255")
    e(f" s_mov_b32 s{sMsk+1}, 0")
    for j in (6, 7, 8): e(f" v_mov_b32 v{c0+j}, 0")
    e(f" s_mov_b32 s{sNext}, {128 * (PEND - first)}")
    e(f" s_mov_b32 s{sFresh}, 0")
    nstep = [0]
    def step():
        e(f" s_cmp_eq_u32 s{sIsC}, 0")
        e(f" s_cbranch_scc1 L_ns{nstep[0]}")
        e(f" s_call_b64 {sp(sRet)}, L_step")
        e(f"L_ns{nstep[0]}:")
        nstep[0] += 1
    e(f" s_lshl_b32 s{sOff}, s{sH}, 17")
    e(f" s_lshl_b32 s{sT0}, s{sW}, 8")
    e(f" s_add_u32 s{sOff}, s{sOff}, s{sT0}")
    for i in range(32):
        e(f" buffer_load_dwordx4 {vr(vW+4*i,4)}, v{vWo}, {srd(rWo)}, s{sOff} offen offset:{1024*(i&3)}")
        if i & 3 == 3: e(f" s_add_u32 s{sOff}, s{sOff}, 4096")
        step()
        e(" s_waitcnt vmcnt(0)")
    for j in range(4): ln_apply(vXf + 2*j, vXf + 2*j + 1, sM1, sR1)
    e(f" v_lshlrev_b32 v{vXa}, 16, v{vXc}")
    e(f" v_and_b32 v{vXb}, 0xffff0000, v{vXc}")
    e(f" v_mov_b32 v{vHa}, v{vXa}")
    e(f" v_mov_b32 v{vHb}, v{vXb}")
    ln_apply(vHa, vHb, sM1, sR1)
    ln_stats(sT2, sT3)
    ln_apply(vHa, vHb, sT2, sT3)
    e(f" s_mov_b32 s{sC3}, {hx(f2u(C3))}")
    e(f" v_mov_b32 v{vXf+7}, {hx(f2u(C1))}")
    e(f" v_mov_b32 v{vBa}, 0")
    e(f" v_mov_b32 v{vBb}, 0")
    e(f" v_lshlrev_b32 v{vXf}, 2, v{vLane}")
    e(f" s_mov_b32 s{sT0}, 11")
    e("L_mlp:")
    e(f" buffer_load_dword v{vXf+1}, v{vXf}, {srd(rW1)}, 0 offen")
    e(f" buffer_load_dword v{vXf+3}, v{vXf}, {srd(rB1)}, 0 offen")
    e(f" buffer_load_dword v{vXf+5}, v{vXf}, {srd(rW2)}, 0 offen")
    e(f" v_add_u32 v{vXf}, 256, v{vXf}")
    step()
    e(" s_waitcnt vmcnt(0)")
    e(f" v_and_b32 v{vXf+2}, 0xffff0000, v{vXf+1}")
    e(f" v_lshlrev_b32 v{vXf+1}, 16, v{vXf+1}")
    e(f" v_and_b32 v{vXf+4}, 0xffff0000, v{vXf+3}")
    e(f" v_lshlrev_b32 v{vXf+3}, 16, v{vXf+3}")
    u = [vt, vt+1, vt+2, vt+3]; z = [vt+4, vt+5, vt+6, vt+7]; hs = [vHa, vHa, vHb, vHb]
    for k in range(4): e(f" v_mul_f32 v{u[k]}, v{hs[k]}, v{vXf+1+(k&1)}")
    rnd2(u[0], u[1], vt+8); rnd2(u[2], u[3], vt+9)
    for k in range(4): e(f" v_add_f32 v{u[k]}, v{u[k]}, v{vXf+3+(k&1)}")
    rnd2(u[0], u[1], vt+8); rnd2(u[2], u[3], vt+9)
    for k in range(4): e(f" v_mul_f32 v{z[k]}, v{u[k]}, v{u[k]}")
    for k in range(4): e(f" v_fma_f32 v{z[k]}, v{z[k]}, s{sC3}, v{vXf+7}")
    for k in range(4): e(f" v_mul_f32 v{z[k]}, v{z[k]}, v{u[k]}")
    for k in range(4): e(f" v_exp_f32 v{z[k]}, v{z[k]}")
    e(" s_nop 0")
    for k in range(4): e(f" v_add_f32 v{z[k]}, 1.0, v{z[k]}")
    for k in range(4): e(f" v_rcp_f32 v{z[k]}, v{z[k]}")
    e(" s_nop 0")
    for k in range(4): e(f" v_mul_f32 v{u[k]}, v{u[k]}, v{z[k]}")
    e(f" v_cvt_pk_bf16_f32 v{vt+8}, v{u[0]}, v{u[1]}")
    e(f" v_cvt_pk_bf16_f32 v{vt+9}, v{u[2]}, v{u[3]}")
    e(f" v_dot2_f32_bf16 v{vBa}, v{vt+8}, v{vXf+5}, v{vBa}")
    e(f" v_dot2_f32_bf16 v{vBb}, v{vt+9}, v{vXf+5}, v{vBb}")
    e(f" s_sub_u32 s{sT0}, s{sT0}, 1")
    e(f" s_cmp_lg_u32 s{sT0}, 0")
    e(" s_cbranch_scc1 L_mlp")
    e(" s_nop 1")
    wave_reduce("v_add_f32", [vBa, vBb])
    rnd2(vBa, vBb, vT)
    e(f" v_lshlrev_b32 v{vB2}, 16, v{vB2}")
    e(f" v_add_f32 v{vBa}, v{vBa}, v{vB2}")
    e(f" v_add_f32 v{vBb}, v{vBb}, v{vB2}")
    rnd2(vBa, vBb, vT)
    e(f" s_mov_b32 s{sT0}, 0x05040100")
    e(f" s_mov_b32 s{sT1}, 0x07060302")
    for t in range(4):
        for a in range(4):
            for q in range(4):
                lo, hi = vW + 4*(8*t+2*a) + q, vW + 4*(8*t+2*a+1) + q
                e(f" v_perm_b32 v{vWT+32*t+8*q+a}, v{hi}, v{lo}, s{sT0}")
                e(f" v_perm_b32 v{vWT+32*t+8*q+4+a}, v{hi}, v{lo}, s{sT1}")
    e(f" v_and_b32 v{vt+3}, 60, v{vLane}")
    e(f" ds_write_b32 v{vt+3}, v{vZero} offset:{LDS_Z}")
    e(f" v_and_b32 v{vt}, 3, v{vLane}")
    e(f" v_mul_u32_u24 v{vt}, {OROW}, v{vt}")
    e(f" v_and_b32 v{vt+1}, 48, v{vLane}")
    e(f" v_lshl_add_u32 v{vt}, v{vt+1}, 2, v{vt}")
    e(f" v_add_u32 v{vt}, {LDS_O}, v{vt}")
    e(f" v_mov_b32 v{vt+2}, {LDS_Z}")
    e(f" v_and_b32 v{vt+1}, 12, v{vLane}")
    for val, dst in ((0, vAl), (4, vAh)):
        e(f" v_cmp_eq_u32 vcc, {val}, v{vt+1}")
        e(" s_nop 1")
        e(f" v_cndmask_b32 v{dst}, v{vt+2}, v{vt}, vcc")
    e(f" v_lshrrev_b32 v{vSw}, 2, v{vLane}")
    e(f" s_lshl_b32 s{sT0}, s{sW}, 7")
    e(f" v_lshl_add_u32 v{vSw}, v{vSw}, 3, s{sT0}")
    e(f" v_xor_b32 v{vSw+1}, 8, v{vSw}")
    e(f" v_and_b32 v{vSw+2}, 3, v{vLane}")
    e(f" v_lshlrev_b32 v{vSw+2}, 7, v{vSw+2}")
    e(f" v_lshrrev_b32 v{vSw+3}, 4, v{vLane}")
    e(f" v_lshl_add_u32 v{vSw+2}, v{vSw+3}, 3, v{vSw+2}")
    e(f" s_lshl_b32 s{sT1}, s{sW}, 5")
    e(f" v_add_u32 v{vSw+2}, s{sT1}, v{vSw+2}")
    e(f" v_and_b32 v{vSw+3}, 15, v{vLane}")
    e(f" v_lshl_add_u32 v{vSw+3}, v{vSw+3}, 3, s{sT0}")
    e(f" s_mov_b32 s{sSpin}, {SPIN}")
    e("L_chk:")
    e(f" global_load_dword v{vt}, v{vChk}, {sp(sDbgP)} sc1")
    e(" s_waitcnt vmcnt(0)")
    e(f" v_readfirstlane_b32 s{sT0}, v{vt}")
    e(f" s_cmp_ge_u32 s{sT0}, 64")
    e(" s_cbranch_scc1 L_chkd")
    e(f" s_sub_u32 s{sSpin}, s{sSpin}, 1")
    e(f" s_cmp_lg_u32 s{sSpin}, 0")
    e(" s_cbranch_scc1 L_chk")
    e("L_chkd:")
    e(f" s_cmp_eq_u32 s{sIsC}, 0")
    e(" s_cbranch_scc1 L_ctld")
    e(f" s_mov_b32 s{sSpin}, 256")
    e("L_ctl:")
    e(f" s_call_b64 {sp(sRet)}, L_step")
    e(f" s_cmp_ge_u32 s{sOwn}, {PEND - 4}")
    e(" s_cbranch_scc1 L_ctld")
    e(f" s_sub_u32 s{sSpin}, s{sSpin}, 1")
    e(f" s_cmp_lg_u32 s{sSpin}, 0")
    e(" s_cbranch_scc1 L_ctl")
    e("L_ctld:")
    e(" s_waitcnt vmcnt(0) lgkmcnt(0)")
    e(" s_barrier")
    e(f" ds_read_b128 {vr(vt,4)}, v{vZero} offset:{LDS_ML}")
    e(f" ds_read_b128 {vr(vt+4,4)}, v{vZero} offset:{LDS_ML+16}")
    e(" s_waitcnt lgkmcnt(0)")
    e(f" v_max3_f32 v{vt+8}, v{vt}, v{vt+2}, v{vt+4}")
    e(f" v_max_f32 v{vt+8}, v{vt+8}, v{vt+6}")
    for w in range(4): e(f" v_sub_f32 v{vt+2*w}, v{vt+2*w}, v{vt+8}")
    for w in range(4): e(f" v_mul_f32 v{vt+2*w}, s{sLog2e}, v{vt+2*w}")
    for w in range(4): e(f" v_exp_f32 v{vt+2*w}, v{vt+2*w}")
    e(f" v_mul_f32 v{vt+9}, v{vt}, v{vt+1}")
    for w in range(1, 4): e(f" v_fmac_f32 v{vt+9}, v{vt+2*w}, v{vt+2*w+1}")
    e(f" v_rcp_f32 v{vt+10}, v{vt+9}")
    e(f" v_and_b32 v{vMo}, -2, v{vt+8}")
    e(f" v_and_b32 v{vMo+1}, -2, v{vt+9}")
    e(f" s_cmp_lg_u32 s{sW}, 0")
    e(" s_cbranch_scc1 L_noml")
    e(" s_mov_b64 exec, 1")
    e(f" global_store_dwordx2 v{vMo+2}, {vr(vMo,2)}, {sp(sWs)} sc1")
    e(" s_mov_b64 exec, -1")
    e("L_noml:")
    for w in range(4): e(f" v_mul_f32 v{vG+w}, v{vt+2*w}, v{vt+10}")
    e(f" s_mov_b32 s{sSpin}, {SPIN}")
    e(" s_barrier")
    for t in range(4): e(f" ds_read_b128 {vr(vAop+4*t,4)}, v{vAl} offset:{16*t}")
    for t in range(4): e(f" ds_read_b128 {vr(vAop+16+4*t,4)}, v{vAh} offset:{16*t}")
    e(" s_cbranch_scc1 L_np0")
    e(f" global_load_dwordx2 {vr(vMl,2)}, v{vPm}, {sp(sWs)} sc1")
    e("L_np0:")
    for t in range(4):
        e(f" s_waitcnt lgkmcnt({7-t})")
        for j in range(4):
            e(f" v_mfma_f32_16x16x32_bf16 {vr(vY+4*j,4)}, {vr(vAop+4*t,4)}, {vr(vWT+32*t+4*j,4)}, {'0' if t == 0 else vr(vY+4*j,4)}")
    e(" s_waitcnt lgkmcnt(0)")
    def fin(j):
        e(f" v_mul_f32 v{vAcc+j}, v{vG}, v{vY+4*j}")
        for i in range(1, 4): e(f" v_fmac_f32 v{vAcc+j}, v{vG+i}, v{vY+4*j+i}")
        e(f" v_and_b32 v{vAcc+j}, -2, v{vAcc+j}")
    for j in range(4):
        for t in range(4):
            e(f" v_mfma_f32_16x16x32_bf16 {vr(vY+4*j,4)}, {vr(vAop+16+4*t,4)}, {vr(vWT+32*t+4*(j+4),4)}, {vr(vY+4*j,4)}")
            if j == 3 and t < 2: fin(t)
    fin(2)
    e(" s_nop 2")
    fin(3)
    e(" s_mov_b32 exec_hi, 0")
    e(f" global_store_dwordx4 v{vOut}, {vr(vAcc,4)}, {sp(sWs)} sc1")
    e(" s_mov_b64 exec, -1")
    e(" s_cbranch_scc1 L_np1")
    e(" s_waitcnt vmcnt(1)")
    e("L_poll1:")
    e(f" v_max_u32 v{vt+4}, v{vMl}, v{vMl+1}")
    e(f" v_cmp_eq_u32 vcc, -1, v{vt+4}")
    e(" s_cbranch_vccz L_got1")
    e(f" s_sub_u32 s{sSpin}, s{sSpin}, 1")
    e(f" s_cmp_eq_u32 s{sSpin}, 0")
    e(" s_cbranch_scc1 L_got1")
    e(" s_mov_b64 exec, vcc")
    if sleep1: e(f" s_sleep {sleep1}")
    e(f" global_load_dwordx2 {vr(vMl,2)}, v{vPm}, {sp(sWs)} sc1")
    e(" s_waitcnt vmcnt(0)")
    e(" s_branch L_poll1")
    e("L_got1:")
    e(" s_mov_b64 exec, -1")
    e(f" ds_write_b64 v{vLdsR}, {vr(vMl,2)} offset:{LDS_Q}")
    e(" s_waitcnt lgkmcnt(0)")
    e("L_np1:")
    e(" s_barrier")
    e(f" global_load_dwordx2 {vr(vYs,2)}, v{vPy}, {sp(sWs)} sc1")
    e(f" ds_read_b64 {vr(vMl,2)}, v{vSw} offset:{LDS_Q}")
    e(f" ds_read_b64 {vr(vWt,2)}, v{vSw+1} offset:{LDS_Q}")
    e(" s_waitcnt lgkmcnt(0)")
    e(f" v_sub_f32 v{vWt}, v{vWt}, v{vMl}")
    e(f" v_mul_f32 v{vWt}, s{sLog2e}, v{vWt}")
    e(f" v_exp_f32 v{vWt}, v{vWt}")
    e(f" s_mov_b32 s{sSpin}, {SPIN}")
    e(f" v_fma_f32 v{vWt}, v{vWt}, v{vWt+1}, v{vMl+1}")
    e(f" v_rcp_f32 v{vWt}, v{vWt}")
    e(f" v_mov_b32 v{vt+2}, s{sCol}")
    e(f" v_mul_f32 v{vWt}, v{vWt}, v{vMl+1}")
    e("L_poll:")
    e(" s_waitcnt vmcnt(0)")
    e(f" v_max_u32 v{vt+4}, v{vYs}, v{vYs+1}")
    e(f" v_cmp_eq_u32 vcc, -1, v{vt+4}")
    e(" s_cbranch_vccz L_got")
    e(f" s_sub_u32 s{sSpin}, s{sSpin}, 1")
    e(f" s_cmp_eq_u32 s{sSpin}, 0")
    e(" s_cbranch_scc1 L_got")
    e(" s_mov_b64 exec, vcc")
    e(f" global_load_dwordx2 {vr(vYs,2)}, v{vPy}, {sp(sWs)} sc1")
    e(" s_branch L_poll")
    e("L_got:")
    e(" s_mov_b64 exec, -1")
    e(f" v_mul_f32 v{vt}, v{vYs}, v{vWt}")
    e(f" v_mul_f32 v{vt+1}, v{vYs+1}, v{vWt}")
    for st in ("row_ror:8", "row_ror:4"):
        e(" s_nop 0")
        for r in (vt, vt+1): e(f" v_add_f32_dpp v{r}, v{r}, v{r} {st} {DA}")
    e(f" ds_write_b64 v{vSw+2}, {vr(vt,2)} offset:{LDS_Q+512}")
    e(" s_waitcnt lgkmcnt(0)")
    e(" s_barrier")
    e(f" ds_read_b64 {vr(vt,2)}, v{vSw+3} offset:{LDS_Q+512}")
    e(" s_waitcnt lgkmcnt(0)")
    for k, st in enumerate(("quad_perm:[1,0,3,2]", "quad_perm:[2,3,0,1]", "row_half_mirror", "row_mirror")):
        e(" s_nop 0")
        for r in (vt, vt+1): e(f" v_add_f32_dpp v{r}, v{r}, v{r} {st} {DA}")
    rnd2(vt, vt+1, vT)
    e(f" v_add_f32 v{vt}, v{vt}, v{vXa}")
    e(f" v_add_f32 v{vt+1}, v{vt+1}, v{vXb}")
    rnd2(vt, vt+1, vT)
    e(f" v_add_f32 v{vt}, v{vt}, v{vBa}")
    e(f" v_add_f32 v{vt+1}, v{vt+1}, v{vBb}")
    e(f" v_cvt_pk_bf16_f32 v{vt}, v{vt}, v{vt+1}")
    e(" s_mov_b32 exec_lo, 0\n s_mov_b32 exec_hi, 0x80000000")
    e(f" global_store_dword v{vt+2}, v{vt}, {sp(sOutP)}")
    e("L_end:\n s_endpgm")

    e("L_step:")
    e(f" global_load_dwordx2 {vr(c0+4,2)}, v{c0}, {sp(sWs)} nt")
    e(f" s_mov_b64 exec, {sp(sMsk)}")
    e(f" global_load_dword v{c0+6}, v{c0+2}, {sp(sWs)} sc1")
    e(" s_mov_b64 exec, -1")
    e(" s_waitcnt vmcnt(0)")
    e(f" v_readfirstlane_b32 s{sOwn}, v{c0+4}")
    e(f" v_add_u32 v{c0+4}, v{c0+4}, v{c0+5}")
    e(f" v_cmp_ne_u32 vcc, v{c0+6}, v{c0+7}")
    wave_reduce("v_add_u32", [c0+4])
    e(f" v_mov_b32 v{c0+7}, v{c0+6}")
    e(f" v_readlane_b32 s{sNow}, v{c0+4}, 63")
    e(f" s_or_b32 s{sFresh}, s{sFresh}, vcc_lo")
    e(" s_nop 0")
    e(f" v_sub_u32 v{c0+9}, s{sNow}, v{c0+6}")
    e(f" v_cndmask_b32 v{c0+8}, v{c0+8}, v{c0+9}, vcc")
    e(f" s_cmp_lt_u32 s{sNow}, s{sNext}")
    e(" s_cbranch_scc1 L_stepp")
    e(f" s_add_u32 s{sNext}, s{sNext}, {128 * cstep}")
    e(f" s_cmp_gt_u32 s{sNext}, {128 * (PEND - last)}")
    e(f" s_cselect_b32 s{sNext}, -1, s{sNext}")
    e(f" v_mov_b32 v{c0+10}, s{sNow}")
    e(" s_mov_b64 exec, 1")
    e(f" global_store_dword v{c0+3}, v{c0+10}, {sp(sWs)} sc1")
    e(" s_mov_b64 exec, -1")
    e("L_stepp:")
    e(f" s_cmp_lg_u32 s{sFresh}, s{sMsk}")
    e(" s_cbranch_scc1 L_stepd")
    e(f" v_mov_b32 v{c0+9}, v{c0+8}")
    for st in ("quad_perm:[1,0,3,2]", "quad_perm:[2,3,0,1]", "row_half_mirror"):
        e(" s_nop 1")
        e(f" v_add_u32_dpp v{c0+9}, v{c0+9}, v{c0+9} {st} {DA}")
    e(f" v_subrev_u32 v{c0+9}, {7 * bias}, v{c0+9}")
    e(f" s_sub_i32 s{sFresh}, {PEND - 2}, s{sOwn}")
    e(f" s_min_i32 s{sFresh}, s{sFresh}, {hor}")
    e(f" s_max_i32 s{sFresh}, s{sFresh}, 3")
    e(f" v_cvt_f32_i32 v{c0+9}, v{c0+9}")
    e(f" v_cvt_f32_u32 v{c0+11}, s{sFresh}")
    e(f" v_rcp_f32 v{c0+11}, v{c0+11}")
    e(f" v_mul_f32 v{c0+9}, {hx(f2u(gain / 8))}, v{c0+9}")
    e(f" v_mul_f32 v{c0+9}, v{c0+9}, v{c0+11}")
    e(f" v_cvt_i32_f32 v{c0+9}, v{c0+9}")
    e(f" v_add_u32 v{c0+9}, s{sT0x}, v{c0+9}")
    e(f" v_max_i32 v{c0+9}, {tlo}, v{c0+9}")
    e(f" v_min_i32 v{c0+9}, {thi}, v{c0+9}")
    e(" s_mov_b64 exec, 1")
    e(f" global_store_dword v{c0+1}, v{c0+9}, {sp(sWs)}")
    e(" s_mov_b64 exec, -1")
    e(f" s_mov_b32 s{sFresh}, 0")
    e("L_stepd:")
    e(f" s_setpc_b64 {sp(sRet)}")
    e("L_codeend:")
    e(f'.section .rodata,"a"\n.p2align 6\n.amdhsa_kernel {kname}')
    e("  .amdhsa_next_free_vgpr 256\n  .amdhsa_next_free_sgpr 102\n  .amdhsa_accum_offset 256")
    e("  .amdhsa_group_segment_fixed_size 0\n  .amdhsa_kernarg_size 104\n  .amdhsa_user_sgpr_count 2")
    e("  .amdhsa_user_sgpr_kernarg_segment_ptr 1\n  .amdhsa_system_sgpr_workgroup_id_x 1")
    e("  .amdhsa_float_denorm_mode_32 3")
    e(".end_amdhsa_kernel")
    return "\n".join(L) + "\n"

if __name__ == "__main__":
    if sys.argv[1].endswith(".json"):
        for name, kw in json.load(open(sys.argv[1])).items():
            open(f"k/{name}.s", "w").write(gen(**kw))
    else:
        kw = json.loads(sys.argv[2]) if len(sys.argv) > 2 else {}
        open(sys.argv[1], "w").write(gen(**kw))
```

```python
import sys, struct, json

KNAME = "parallel_sum__gqa_block_cached__mixer_token_mlp__decode_kernel"
def f2u(x): return struct.unpack("<I", struct.pack("<f", x))[0]
def hx(x): return "0x%08x" % (x & 0xffffffff)
LOG2E = 1.4426950408889634
C1 = -2.0 * LOG2E * 0.7978845608028654
C3 = C1 * 0.044715
HEADER = open("parallel_sum__gqa_block_cached__mixer_token_mlp__decode.s.ref").read().split("; Override launch")[0]

NOTES = """;
"""

def gen(NP=7, W=4, WB=5, WE=6, Wp=4, burst=4, wqpace=4, lnat=8, thr=(88, 98), kthr=8, gain=5, bias=163, first=54,
        cstep=8, last=6, hor=12, tlo=16, thi=124, sleep1=0,
        m=(35, 800, 1067, 922, 66, 198, 1203, 931), mw=(498, 241), pv=(419, 8, 2092), rv=(242, 464),
        tv=(218, 2148, 3946, 963, 741), kname=KNAME, stamps=False, one=1, RV=1, nend=0, peel=1, lw=None, fast=2, Wl=None, W0=5):
    L = []; e = L.append
    T, D = 32, 7
    DV = 8 * RV - 1
    assert W < WB <= D - 1 and WB <= WE <= DV - 1
    vs = list(mw) + list(pv) + list(rv) + list(tv); rank = 0
    for bit in range(12):
        p = next((i for i, v in enumerate(vs) if v >> bit & 1), None)
        if p is None: continue
        pvv = vs.pop(p); vs = [v ^ pvv if v >> bit & 1 else v for v in vs]; rank += 1
    assert rank == 12 and all(x < 4096 for x in list(m) + list(mw) + list(pv) + list(rv) + list(tv))
    vT, vMx, vSc, vLdsW, vO16, vLp, vAd, vTl = 0, 1, 2, 3, 4, 5, 6, 7
    vM = 8; vQ = 12; vP = 16; vu = 24; vR0, vR1, vs0, vs1 = 28, 29, 30, 31
    vAcc = 12; vA0, vA1 = 16, 20; vL, vPP0, vPP1, vSn = 24, 25, 26, 27
    vK = 32
    vMy, vPeer, vPg, vPr = 96, 97, 98, 100
    assert vK + 32 * NP <= 256
    vLane, vO0 = 30, 31
    vSw = 4; c0 = 16; vt = 32; vAop = 32
    vX = 48; vXo, vXc, vB2 = 52, 53, 54; vXf = 56
    vLdsR, vOut, vPy, vPm, vBa, vBb, vXa, vXb, vZero, vHa, vHb, vWq, vWo, vChk, vAl, vAh = range(64, 80)
    vG = 80; vMl = 84; vWt = 86; vYs = 88; vMo = 90; vSink = 96; vWT = 96; vW = 128; vY = 224
    sX, sWs = 4, 6
    sWoP, sW1P, sB1P, sW2P, sB2P, sOutP, sDbgP, sVP = 8, 12, 14, 16, 18, 20, 22, 26
    rK, rWq, rWo, rW1, rB1, rW2 = 32, 40, 44, 48, 52, 56
    sW, sB, sH, sHs, sOff, sBase, sCnt, sPos = 60, 61, 62, 63, 64, 65, 66, 67
    sMx, sScale, sLog2e, sT0, sT1, sT2, sT3 = 68, 69, 70, 71, 72, 73, 74
    sM1, sR1, sCol, sReg, sW8, sRet, sC3, sSpin = 75, 76, 77, 78, 79, 80, 83, 84
    sProg, sLate, sThr, sIdx, sAd = 28, 29, 85, 48, 51
    sNext, sFresh, sT0x, sIsC, sOwn, sNow, sMsk = 36, 37, 38, 39, 28, 29, 30
    def srd(r): return f"s[{r}:{r+3}]"
    def sp(r): return f"s[{r}:{r+1}]"
    def vr(r, n): return f"v[{r}:{r+n-1}]"
    LDS_Q, LDS_O, LDS_ML, LDS_XB, LDS_Z, LDS_SC = 0, 2048, 8192, 8256, 8320, 8448
    LDS_SIZE = LDS_SC + 8192 + 64
    OROW = 272
    WS_ML = 512 * 1024; WS_F = WS_ML + 65536; WS_R = WS_F + 8192
    PEND = 1 + (T - NP) + T
    SPIN = 0x40000
    DA = "row_mask:0xf bank_mask:0xf"

    def wave_reduce(op, regs, quads=True):
        steps = ["quad_perm:[1,0,3,2] " + DA, "quad_perm:[2,3,0,1] " + DA] if quads else []
        steps += ["row_half_mirror " + DA, "row_mirror " + DA,
                  "row_bcast:15 row_mask:0xa bank_mask:0xf", "row_bcast:31 row_mask:0xc bank_mask:0xf"]
        for st in steps:
            e(f" s_nop {1 if len(regs) == 1 else 0}")
            for r in regs: e(f" {op}_dpp v{r}, v{r}, v{r} {st}")
    def rnd2(a, b, t):
        e(f" v_cvt_pk_bf16_f32 v{t}, v{a}, v{b}")
        e(f" v_lshlrev_b32 v{a}, 16, v{t}")
        e(f" v_and_b32 v{b}, 0xffff0000, v{t}")
    def rnd1(a):
        e(f" v_cvt_pk_bf16_f32 v{a}, v{a}, v{a}")
        e(f" v_and_b32 v{a}, 0xffff0000, v{a}")
    def ln_stats(sm, sr):
        for j in range(4): e(f" v_add_f32 v{vt+j}, v{vXf+2*j}, v{vXf+2*j+1}")
        e(f" v_add_f32 v{vt}, v{vt}, v{vt+1}")
        e(f" v_add_f32 v{vt+2}, v{vt+2}, v{vt+3}")
        e(f" v_add_f32 v{vt}, v{vt}, v{vt+2}")
        wave_reduce("v_add_f32", [vt])
        e(f" v_mul_f32 v{vt}, {hx(f2u(1/512))}, v{vt}")
        e(" s_nop 0")
        e(f" v_readlane_b32 s{sT0}, v{vt}, 63")
        e(f" v_cvt_pk_bf16_f32 v{vt+9}, v{vt}, v{vt}")
        e(f" v_and_b32 v{vt+9}, 0xffff0000, v{vt+9}")
        for j in range(8): e(f" v_subrev_f32 v{vt+1+j}, s{sT0}, v{vXf+j}")
        e(f" v_readlane_b32 s{sm}, v{vt+9}, 63")
        e(f" v_mul_f32 v{vt}, v{vt+1}, v{vt+1}")
        for j in range(1, 8): e(f" v_fmac_f32 v{vt}, v{vt+1+j}, v{vt+1+j}")
        wave_reduce("v_add_f32", [vt])
        e(f" v_mul_f32 v{vt}, {hx(f2u(1/512))}, v{vt}")
        rnd1(vt)
        e(f" v_add_f32 v{vt}, {hx(f2u(1e-5))}, v{vt}")
        rnd1(vt)
        e(f" v_sqrt_f32 v{vt}, v{vt}")
        e(" s_nop 0")
        rnd1(vt)
        e(f" v_rcp_f32 v{vt}, v{vt}")
        e(" s_nop 1")
        e(f" v_readlane_b32 s{sr}, v{vt}, 63")
        e(" s_nop 1")
    def ln_apply(a, b, sm, sr):
        e(f" v_subrev_f32 v{a}, s{sm}, v{a}")
        e(f" v_subrev_f32 v{b}, s{sm}, v{b}")
        rnd2(a, b, vT)
        e(f" v_mul_f32 v{a}, s{sr}, v{a}")
        e(f" v_mul_f32 v{b}, s{sr}, v{b}")
        rnd2(a, b, vT)
    def masks(t):
        e("; vM[r] keeps bf16 slot (lane & 15) of an MFMA A row; vLdsW = slot of a 16x16 result (rows 0..7) in LDS")
        e(f" v_and_b32 v{t}, 15, v{vLane}")
        e(f" v_and_b32 v{t+1}, 1, v{vLane}")
        e(f" v_lshlrev_b32 v{t+1}, 4, v{t+1}")
        e(f" v_mov_b32 v{t+2}, 0xffff")
        e(f" v_lshlrev_b32 v{t+2}, v{t+1}, v{t+2}")
        e(f" v_lshrrev_b32 v{t+3}, 1, v{t}")
        for r in range(4):
            e(f" v_cmp_eq_u32 vcc, {r}, v{t+3}")
            e(" s_nop 1")
            e(f" v_cndmask_b32 v{vM+r}, 0, v{t+2}, vcc")
        e(f" v_lshlrev_b32 v{vLdsW}, 5, v{t}")
        e(f" v_and_b32 v{t+1}, 16, v{vLane}")
        e(f" v_or_b32 v{vLdsW}, v{vLdsW}, v{t+1}")
        e(f" v_and_b32 v{t+1}, 32, v{vLane}")
        e(f" v_lshl_or_b32 v{vLdsW}, v{t+1}, 7, v{vLdsW}")
        e(f" s_lshl_b32 s{sT0}, s{sW}, 9")
        e(f" v_add_u32 v{vLdsW}, s{sT0}, v{vLdsW}")
    def slot_thr(dst):
        e(f" s_getreg_b32 s{dst}, hwreg(HW_REG_XCC_ID, 0, 1)")
        e(f" s_mul_i32 s{dst}, s{dst}, {thr[1] - thr[0]}")
        e(f" s_add_u32 s{dst}, s{dst}, {thr[0]}")
    def addr(n):
        x = 0
        for i in range(3):
            if n >> i & 1: x ^= pv[i] << 8
        if x:
            e(f" s_xor_b32 s{sAd}, s{sOff}, {hx(x)}")
            e(f" v_xor_b32 v{vAd}, s{sAd}, v{vLp}")
        else:
            e(f" v_xor_b32 v{vAd}, s{sOff}, v{vLp}")
    def ld(reg):
        e(f" buffer_load_dwordx4 {vr(reg,4)}, v{vAd}, {srd(rK)}, 0 offen nt")
    def next_tile():
        e(f" s_add_u32 s{sIdx}, s{sIdx}, 1")
        e(f" v_readlane_b32 s{sPos}, v{vTl}, s{sIdx}")
        e(f" s_xor_b32 s{sOff}, s{sBase}, s{sPos}")
    def scores():
        for hi in range(2):
            for t in range(2):
                for k in range(2):
                    s_ = vP + 4*t + 2*hi + k
                    e(f" v_add_f32_dpp v{vu+2*t+k}, v{s_}, v{s_} row_ror:8 row_mask:0xf bank_mask:{'0xc' if hi else '0x3'}")
        e(f" v_add_f32_dpp v{vR0}, v{vu}, v{vu} row_half_mirror row_mask:0xf bank_mask:0x5")
        e(f" v_add_f32_dpp v{vR1}, v{vu+2}, v{vu+2} row_half_mirror row_mask:0xf bank_mask:0x5")
        e(" s_nop 0")
        e(f" v_add_f32_dpp v{vR0}, v{vu+1}, v{vu+1} row_half_mirror row_mask:0xf bank_mask:0xa")
        e(f" v_add_f32_dpp v{vR1}, v{vu+3}, v{vu+3} row_half_mirror row_mask:0xf bank_mask:0xa")
        for st in ("quad_perm:[1,0,3,2]", "quad_perm:[2,3,0,1]"):
            e(" s_nop 0")
            e(f" v_add_f32_dpp v{vR0}, v{vR0}, v{vR0} {st} {DA}")
            e(f" v_add_f32_dpp v{vR1}, v{vR1}, v{vR1} {st} {DA}")
        rnd2(vR0, vR1, vT)
        e(f" v_mul_f32 v{vR0}, s{sScale}, v{vR0}")
        e(f" v_mul_f32 v{vR1}, s{sScale}, v{vR1}")
        rnd2(vR0, vR1, vT)
        e(f" ds_write_b32 v{vSc}, v{vT} offset:{LDS_SC}")
        e(f" v_max3_f32 v{vMx}, v{vR0}, v{vR1}, v{vMx}")
        e(f" v_add_u32 v{vSc}, 64, v{vSc}")
    NF = 2
    def cntw(n, w): return w + 2 * sum(1 for k in range(3) if 0 <= n - NF + 8 * k < w)
    def balance_eval(off):
        e("; load balance: how many of the 128 streaming waves of this slot were as far one trip ago; late waves get one more load in flight")
        e(f" v_cmp_le_u32 s[24:25], s{sProg}, v{vPr}")
        e(f" v_cmp_le_u32 s[30:31], s{sProg}, v{vPr+1}")
        e(f" v_cmp_le_u32 s[36:37], s{sProg}, v{vPr+2}")
        e(f" v_cmp_le_u32 s[38:39], s{sProg}, v{vPr+3}")
        e(f" v_readlane_b32 s{sThr}, v{vPr}, 32")
        e(" s_mov_b32 s25, s30")
        e(" s_mov_b32 s37, s38")
        e(f" s_bcnt1_i32_b64 s{sLate}, s[24:25]")
        e(f" s_bcnt1_i32_b64 s{sT0}, s[36:37]")
        e(f" s_add_u32 s{sLate}, s{sLate}, s{sT0}")
        e(f" s_add_u32 s{sProg}, s{sProg}, 1")
        if off: e(f" s_add_u32 s{sLate}, s{sLate}, {off}")
        e(f" s_cmp_ge_u32 s{sLate}, s{sThr}")
        e(" s_cselect_b64 vcc, 0, -1")
    def balance_issue():
        e(f" v_mov_b32 v{vPg}, s{sProg}")
        e(f" global_load_dwordx4 {vr(vPr,4)}, v{vPeer}, {sp(sWs)} nt")
        e(" s_mov_b64 exec, 1")
        e(f" global_store_dword v{vMy}, v{vPg}, {sp(sWs)}")
        e(" s_mov_b64 exec, -1")
    def waits(lab, n, end):
        if end and nend:
            e(f" s_cmp_le_u32 s{sCnt}, {nend}")
            e(f" s_waitcnt vmcnt({cntw(n, WE)})")
            e(f" s_cbranch_scc1 {lab}")
        e(f" s_waitcnt vmcnt({cntw(n, WB)})")
        e(f" s_cbranch_vccz {lab}")
        e(f" s_waitcnt vmcnt({cntw(n, W)})")
        e(f"{lab}:")

    e(HEADER.rstrip())
    e(f"; @launch grid=(256,1,1) block=(512,1,1) lds={LDS_SIZE}")
    e(NOTES.rstrip())
    e('.amdgcn_target "amdgcn-amd-amdhsa--gfx950"')
    e(f".text\n.globl {kname}\n.p2align 8\n.type {kname},@function\n{kname}:")
    e(" s_cmpk_ge_u32 s2, 256\n s_cbranch_scc1 L_end")
    if stamps: e(" s_memrealtime s[86:87]")
    if fast:
        e(" s_load_dwordx8 s[32:39], s[0:1], 8")
        e(" s_and_b32 s3, s2, 7")
        e(" s_lshr_b32 s24, s2, 6")
        e(" s_lshl3_add_u32 s3, s24, s3")
        e(" s_lshr_b32 s24, s2, 3")
        e(" s_and_b32 s24, s24, 7")
        e(" s_lshl3_add_u32 s25, s3, s24")
        e(" s_lshl_b32 s25, s25, 14")
        e(" v_lshl_add_u32 v1, v0, 5, s25")
        if fast & 1:
            e(" s_lshl_b32 s24, s24, 19")
            e(" s_lshl_b32 s3, s3, 8")
            e(" s_or_b32 s24, s24, s3")
            e(" v_lshrrev_b32 v2, 3, v0")
            e(" v_lshl_add_u32 v2, v2, 13, s24")
            e(" v_and_b32 v3, 0xe0, v1")
            e(" v_or_b32 v2, v2, v3")
        e(" s_waitcnt lgkmcnt(0)")
        if fast & 1: e(" global_load_dword v28, v2, s[36:37]")
        if fast & 2: e(" global_load_dword v29, v1, s[38:39]")
        e(f" s_load_dwordx2 {sp(sX)}, s[0:1], 0")
        e(" s_load_dwordx16 s[8:23], s[0:1], 32")
        e(f" s_load_dwordx2 {sp(sWs)}, s[0:1], 96")
        e(f" s_mov_b64 {sp(sVP)}, s[34:35]")
        e(f" s_mov_b64 {sp(rWq)}, s[36:37]")
    else:
        e(f" s_load_dwordx2 {sp(rK)}, s[0:1], 8")
        e(f" s_load_dwordx2 {sp(rWq)}, s[0:1], 24")
        e(f" s_load_dwordx2 {sp(sX)}, s[0:1], 0")
        e(f" s_load_dwordx2 {sp(sVP)}, s[0:1], 16")
        e(" s_load_dwordx16 s[8:23], s[0:1], 32")
        e(f" s_load_dwordx2 {sp(sWs)}, s[0:1], 96")
    e(" v_lshrrev_b32 v1, 6, v0")
    e(f" v_and_b32 v{vLane}, 63, v0")
    e(f" v_readfirstlane_b32 s{sW8}, v1")
    e(f" v_lshlrev_b32 v{vO0}, 4, v{vLane}")
    e(f" s_bfe_u32 s{sReg}, s2, 0x10003")
    e(f" s_and_b32 s{sT0}, s2, 7")
    e(f" s_lshl1_add_u32 s{sReg}, s{sT0}, s{sReg}")
    e(f" s_and_b32 s{sT0}, s2, 0xf0")
    e(f" s_or_b32 s{sReg}, s{sReg}, s{sT0}")
    e(f" s_and_b32 s{sW}, s{sW8}, 3")
    e(f" s_cmp_ge_u32 s{sW8}, 4")
    e(" s_cbranch_scc1 L_aux")

    e(" s_setprio 2")
    e(f" s_lshl_b32 s{sBase}, s{sReg}, 20")
    for src, vec in (("s2", m), (f"s{sW8}", mw)):
        for i, x in enumerate(vec):
            e(f" s_bitcmp1_b32 {src}, {i}")
            e(f" s_cselect_b32 s{sT0}, {hx(x << 8)}, 0")
            e(f" s_xor_b32 s{sBase}, s{sBase}, s{sT0}")
    e(f" v_and_b32 v{vLp}, 0xf0, v{vO0}")
    for i in range(2):
        e(f" v_bfe_i32 v{vAd}, v{vLane}, {4+i}, 1")
        e(f" v_and_b32 v{vAd}, {hx(rv[i] << 8)}, v{vAd}")
        e(f" v_xor_b32 v{vLp}, v{vLp}, v{vAd}")
    e(f" s_mov_b32 s{sOff}, s{sBase}")
    e(f" s_mov_b32 s{rK+2}, 0x10000000\n s_mov_b32 s{rK+3}, 0x00020000")
    if not fast: e(" s_waitcnt lgkmcnt(0)")
    cnt = 0
    for b in range(NP):
        for n in range(8):
            addr(n)
            if W0 <= cnt < 8 * NP - burst: e(f" s_waitcnt vmcnt({Wl[b] if Wl else Wp})")
            ld(vK + 32*b + 4*n)
            cnt += 1
            if cnt == min(W0, 8):
                e("; lane t of vTl = offset of tile t & 31")
                e(f" v_mov_b32 v{vTl}, 0")
                for i in range(5):
                    e(f" v_bfe_i32 v{vP}, v{vLane}, {i}, 1")
                    e(f" v_and_b32 v{vP}, {hx(tv[i] << 8)}, v{vP}")
                    e(f" v_xor_b32 v{vTl}, v{vTl}, v{vP}")
                e(f" s_mov_b32 s{sIdx}, 0")
                masks(vP)
                if fast: e(" s_waitcnt lgkmcnt(0)")
                e(f" v_lshrrev_b32 v{vLdsW}, 1, v{vLdsW}")
                e(f" s_mul_i32 s{sT0}, s{sW}, {OROW - 256}")
                e(f" v_add_u32 v{vLdsW}, s{sT0}, v{vLdsW}")
                e(f" v_mov_b32 v{vO16}, v{vO0}")
                e(f" s_mov_b32 s{sScale}, {hx(f2u(128 ** -0.5))}")
                e(f" s_mov_b32 s{sLog2e}, {hx(f2u(LOG2E))}")
                e(f" v_mov_b32 v{vMx}, 0xff800000")
                e(f" s_lshl_b32 s{sT0}, s{sW}, 11")
                e(f" v_and_b32 v{vSc}, 60, v{vLane}")
                e(f" v_add_u32 v{vSc}, s{sT0}, v{vSc}")
                e(f" v_and_b32 v{vT}, 15, v{vLane}")
                e(f" v_lshlrev_b32 v{vT}, 5, v{vT}")
                e(f" s_mov_b32 s{sCnt}, {T - NP}")
        next_tile()
    e(" s_barrier")
    for hh in range(2):
        for w in range(4): e(f" ds_read_b128 {vr(vP+4*w,4)}, v{vT} offset:{LDS_Q+512*w+16*hh}")
        e(" s_waitcnt lgkmcnt(0)")
        for j in range(4): e(f" v_add_f32 v{vP+j}, v{vP+j}, v{vP+4+j}")
        for j in range(4): e(f" v_add_f32 v{vP+8+j}, v{vP+8+j}, v{vP+12+j}")
        for j in range(4): e(f" v_add_f32 v{vP+j}, v{vP+j}, v{vP+8+j}")
        for j in range(2): e(f" v_cvt_pk_bf16_f32 v{vQ+2*hh+j}, v{vP+2*j}, v{vP+2*j+1}")
    for b in range(NP):
        kb = vK + 32 * b
        e(f" s_waitcnt vmcnt({8*(NP-1-b) + (D if b else 0)})")
        for r in range(4):
            for n in range(8):
                c = "0" if r == 0 else f"v{vP+n}"
                e(f" v_dot2_f32_bf16 v{vP+n}, v{kb+4*n+r}, v{vQ+r}, {c}")
        if b == 0:
            for n in range(D):
                addr(n); ld(vK + 4*n)
        scores()
    e(f" s_and_b32 s{sT0}, s2, 7")
    e(f" s_lshl_b32 s{sT0}, s{sT0}, 10")
    e(f" s_add_u32 s{sT0}, s{sT0}, {WS_F}")
    e(f" s_lshr_b32 s{sT1}, s2, 3")
    e(f" s_lshl2_add_u32 s{sT1}, s{sT1}, s{sW}")
    e(f" s_lshl2_add_u32 s{sT1}, s{sT1}, s{sT0}")
    e(f" v_mov_b32 v{vMy}, s{sT1}")
    e(f" v_min_u32 v{vPeer}, 512, v{vO16}")
    e(f" v_add_u32 v{vPeer}, s{sT0}, v{vPeer}")
    for j in range(4): e(f" v_mov_b32 v{vPr+j}, 0")
    e(f" v_writelane_b32 v{vPr}, 64, 32")
    e(f" s_mov_b32 s{sProg}, 1")
    e(" s_mov_b64 vcc, -1")
    e("L_kloop:")
    for n in range(8):
        if n == 8 - D:
            balance_eval(kthr)
            next_tile()
            e(f" s_sub_u32 s{sCnt}, s{sCnt}, 1")
            e(f" s_cmp_eq_u32 s{sCnt}, 0")
            e(f" s_cselect_b32 s{rK}, s{sVP}, s{rK}")
            e(f" s_cselect_b32 s{rK+1}, s{sVP+1}, s{rK+1}")
        addr((n + D) % 8)
        waits(f"L_k{n}", n, False)
        ld(vK + 4*((n + D) % 8))
        if n == NF - 1: balance_issue()
        for r in range(4):
            c = "0" if r == 0 else f"v{vP+n}"
            e(f" v_dot2_f32_bf16 v{vP+n}, v{vK+4*n+r}, v{vQ+r}, {c}")
    scores()
    e(f" s_cmp_lg_u32 s{sCnt}, 0")
    e(" s_cbranch_scc1 L_kloop")
    e(f" v_subrev_u32 v{vSc}, {64*T}, v{vSc}")
    e(f" v_mov_b32 v{vL}, 0")
    e(f" ds_read_b32 v{vSn}, v{vSc} offset:{LDS_SC}")
    for j in range(4): e(f" v_mov_b32 v{vAcc+j}, 0")
    wave_reduce("v_max_f32", [vMx], quads=False)
    e(f" s_mov_b32 s{sCnt}, {T}")
    e(f" v_readlane_b32 s{sMx}, v{vMx}, 63")
    def probs(more):
        e(" s_waitcnt lgkmcnt(0)")
        e(f" v_lshlrev_b32 v{vR0}, 16, v{vSn}")
        e(f" v_and_b32 v{vR1}, 0xffff0000, v{vSn}")
        if more: e(f" ds_read_b32 v{vSn}, v{vSc} offset:{LDS_SC+64}")
        e(f" v_subrev_f32 v{vR0}, s{sMx}, v{vR0}")
        e(f" v_subrev_f32 v{vR1}, s{sMx}, v{vR1}")
        e(f" v_mul_f32 v{vR0}, s{sLog2e}, v{vR0}")
        e(f" v_mul_f32 v{vR1}, s{sLog2e}, v{vR1}")
        e(f" v_exp_f32 v{vR0}, v{vR0}")
        e(f" v_exp_f32 v{vR1}, v{vR1}")
        e(f" v_add_u32 v{vSc}, 64, v{vSc}")
        e(f" v_cvt_pk_bf16_f32 v{vPP0}, v{vR0}, v{vR0}")
        e(f" v_cvt_pk_bf16_f32 v{vPP1}, v{vR1}, v{vR1}")
        e(f" v_add_f32 v{vL}, v{vL}, v{vR0}")
        e(f" v_add_f32 v{vL}, v{vL}, v{vR1}")
    def handover():
        e("; last tile: max and sum of this wave are final, hand them over while the last loads land")
        wave_reduce("v_add_f32", [vL], quads=False)
        e(f" v_mov_b32 v{vs0}, s{sMx}")
        e(f" v_readlane_b32 s{sT0}, v{vL}, 63")
        e(f" v_mov_b32 v{vT}, s{sW}")
        e(f" v_lshlrev_b32 v{vT}, 3, v{vT}")
        e(f" v_mov_b32 v{vs1}, s{sT0}")
        e(f" ds_write_b64 v{vT}, {vr(vs0,2)} offset:{LDS_ML}")
        e(" s_waitcnt lgkmcnt(0)")
        e(" s_barrier")
    assert not (peel and RV != 1)
    if RV == 2:
        e("; the V pass looks 15 pieces ahead: eight more loads first")
        for n in range(8):
            if n == 1:
                balance_eval(0)
                next_tile()
            addr((n + 7) % 8)
            waits(f"L_f{n}", n, False)
            ld(vK + 4*(n + 7))
            if n == NF - 1: balance_issue()
    e("; ---- V pass")
    e("L_vloop:")
    for st in range(RV):
        probs(True)
        for n in range(8):
            a = vA0 if n % 2 == 0 else vA1
            for r in range(4):
                e(f" v_and_b32_dpp v{a+r}, v{vPP0 if n < 4 else vPP1}, v{vM+r} row_newbcast:{4*(n&3)} {DA}")
            if n == 8 - D:
                e(f" s_sub_u32 s{sCnt}, s{sCnt}, 1")
                if peel:
                    e(f" s_cmp_eq_u32 s{sCnt}, {peel - 1}")
                    e(" s_cbranch_scc1 L_last")
                balance_eval(0)
                next_tile()
                if not peel:
                    e(f" s_cmp_eq_u32 s{sCnt}, {RV - 1}")
                    e(f" s_cselect_b32 s{rK+2}, 0, s{rK+2}")
            if n == 8 - D and st == RV - 1 and not peel:
                e(f" s_cmp_eq_u32 s{sCnt}, 0")
                e(" s_cbranch_scc0 L_notlast")
                handover()
                e("L_notlast:")
            addr((n + D) % 8)
            waits(f"L_v{st}_{n}", n, True)
            ld(vK + 4*((8*st + n + DV) % (8*RV)))
            e(f" v_mfma_f32_16x16x32_bf16 {vr(vAcc,4)}, {vr(a,4)}, {vr(vK+32*st+4*n,4)}, {vr(vAcc,4)}")
            if n == NF - 1: balance_issue()
    if peel:
        e(" s_branch L_vloop")
        e("L_last:")
        def mkA(dst, n):
            for r in range(4):
                e(f" v_and_b32_dpp v{dst+r}, v{vPP0 if n < 4 else vPP1}, v{vM+r} row_newbcast:{4*(n&3)} {DA}")
        if peel == 2:
            e("; the last tile is requested at once, into spare registers")
            next_tile()
            for n in range(8):
                addr(n)
                if lw is not None: e(f" s_waitcnt vmcnt({lw})")
                ld(128 + 4*n)
            for n in range(2, 8): mkA(64 + 4*n, n)
            probs(False)
            handover()
            for n in range(8): mkA(160 + 4*n, n)
            for n in range(1, 8):
                e(f" s_waitcnt vmcnt({15 - n})")
                e(f" v_mfma_f32_16x16x32_bf16 {vr(vAcc,4)}, {vr(vA1 if n == 1 else 64+4*n,4)}, {vr(vK+4*n,4)}, {vr(vAcc,4)}")
            for n in range(8):
                e(f" s_waitcnt vmcnt({7 - n})")
                e(f" v_mfma_f32_16x16x32_bf16 {vr(vAcc,4)}, {vr(160+4*n,4)}, {vr(128+4*n,4)}, {vr(vAcc,4)}")
        else:
            handover()
            for n in range(2, 8): mkA(64 + 4*n, n)
            for n in range(1, 8):
                e(f" s_waitcnt vmcnt({7 - n})")
                e(f" v_mfma_f32_16x16x32_bf16 {vr(vAcc,4)}, {vr(vA1 if n == 1 else 64+4*n,4)}, {vr(vK+4*n,4)}, {vr(vAcc,4)}")
        e(" s_nop 7")
    else:
        e(f" s_cmp_lg_u32 s{sCnt}, 0")
        e(" s_cbranch_scc1 L_vloop")
        e(" s_nop 5")
    e(f" v_cvt_pk_bf16_f32 v{vR0}, v{vAcc}, v{vAcc+1}")
    e(f" v_cvt_pk_bf16_f32 v{vR1}, v{vAcc+2}, v{vAcc+3}")
    e(f" ds_write_b64 v{vLdsW}, {vr(vR0,2)} offset:{LDS_O}")
    e(" s_waitcnt lgkmcnt(0)")
    e(" s_barrier")
    e(" s_endpgm")

    e("L_aux:")
    e(f" s_lshr_b32 s{sB}, s{sReg}, 6")
    e(f" s_and_b32 s{sHs}, s{sReg}, 63")
    e(f" s_lshr_b32 s{sH}, s{sHs}, 1")
    e(f" s_mov_b32 s{rWq+2}, 0x400000\n s_mov_b32 s{rWq+3}, 0x00020000")
    e(f" v_and_b32 v{vt+3}, 0x300, v{vO0}               ; (l >> 4) * 256")
    e(f" v_and_b32 v{vt+2}, 0xf0, v{vO0}                ; (l & 15) * 16")
    e(f" v_lshl_or_b32 v{vWq}, v{vt+3}, 10, v{vt+2}")
    e(f" v_lshl_or_b32 v{vWo}, v{vt+3}, 7, v{vt+2}")
    e(f" s_lshl_b32 s{sT1}, s{sB}, 10")
    e(f" v_add_u32 v{vt}, s{sT1}, v{vO0}")
    e(f" s_lshl_b32 s{sT2}, s{sW}, 8")
    e(f" s_add_u32 s{sT1}, s{sT1}, s{sT2}")
    e(f" s_and_b32 s{sT3}, s{sReg}, 1")
    e(f" s_lshl1_add_u32 s{sT3}, s{sB}, s{sT3}")
    e(f" s_lshl_b32 s{sT2}, s{sT3}, 1")
    e(f" v_xor_b32 v{vt+1}, s{sT2}, v{vLane}")
    e(f" v_lshl_add_u32 v{vt+1}, v{vt+1}, 2, s{sT1}")
    e(f" s_lshl_b32 s{sBase}, s{sW}, 20")
    e(f" s_lshl_b32 s{sT1}, s{sH}, 8")
    e(f" s_add_u32 s{sBase}, s{sBase}, s{sT1}")
    e(f" s_lshl_b32 s{sT1}, s{sT3}, 15")
    e(f" s_add_u32 s{sBase}, s{sBase}, s{sT1}")
    e(f" s_lshl3_add_u32 s{sPos}, s{sH}, s{sT3}")
    e(f" s_lshl2_add_u32 s{sPos}, s{sPos}, s{sW}")
    e(f" s_lshl_b32 s{sPos}, s{sPos}, 12")
    e(f" v_add_u32 v{vt+14}, s{sPos}, v{vO0}")
    e(f" s_lshl_b32 s{sT0}, s{sB}, 17")
    e(f" s_lshl_b32 s{sT2}, s{sHs}, 8")
    e(f" s_add_u32 s{sT0}, s{sT0}, s{sT2}")
    e(f" v_lshl_or_b32 v{vt+9}, v{vt+3}, 6, v{vt+2}")
    e(f" v_add_u32 v{vt+9}, s{sT0}, v{vt+9}")
    e(f" v_add_u32 v{vt+13}, 0x10000, v{vt+9}")
    e(f" s_lshl_b32 s{sT0}, s{sReg}, 7")
    e(f" s_add_u32 s{sT0}, s{sT0}, {WS_ML}")
    e(f" v_mov_b32 v{vMo+2}, s{sT0}")
    for j in range(4): e(f" v_mov_b32 v{vt+4+j}, -1")
    e(" s_waitcnt lgkmcnt(0)")
    e(f" s_cmp_lg_u32 s{sW}, 0")
    e(" s_cbranch_scc1 L_nc")
    e(f" global_store_dwordx4 v{vt+9}, {vr(vt+4,4)}, {sp(sWs)} sc1")
    e(f" global_store_dwordx4 v{vt+13}, {vr(vt+4,4)}, {sp(sWs)} sc1")
    e(" s_mov_b64 exec, 1")
    e(f" global_store_dwordx2 v{vMo+2}, {vr(vt+4,2)}, {sp(sWs)} sc1")
    e(" s_mov_b64 exec, -1")
    e(" s_cmp_ge_u32 s2, 8")
    e(" s_cbranch_scc1 L_nc")
    e(f" s_lshl_b32 s{sT0}, s2, 10")
    e(f" s_add_u32 s{sT0}, s{sT0}, {WS_F}")
    e(f" v_add_u32 v{vSink+20}, s{sT0}, v{vO0}")
    for j in range(4): e(f" v_mov_b32 v{vSink+24+j}, 0")
    e(f" v_add_u32 v{vSink+21}, {WS_R - WS_F}, v{vSink+20}")
    slot_thr(sT0)
    e(f" v_writelane_b32 v{vSink+24}, s{sT0}, 32")
    e(f" global_store_dwordx4 v{vSink+20}, {vr(vSink+24,4)}, {sp(sWs)} sc1")
    e(" s_mov_b64 exec, 0xff")
    e(f" global_store_dwordx4 v{vSink+21}, {vr(vSink+24,4)}, {sp(sWs)} sc1")
    e(" s_mov_b64 exec, -1")
    e("L_nc:")
    e(f" global_load_dwordx4 {vr(vX,4)}, v{vt}, {sp(sX)}")
    e(f" global_load_dword v{vXo}, v{vt+1}, {sp(sX)}")
    def wq_loads(lo, hi):
        for i in range(lo, hi):
            e(f" s_xor_b32 s{sOff}, s{sBase}, {i*8192}")
            if i >= lnat: e(f" s_waitcnt vmcnt({wqpace-1})")
            e(f" buffer_load_dwordx4 {vr(vW+4*i,4)}, v{vWq}, {srd(rWq)}, s{sOff} offen")
            if i == 3 and not fast & 2:
                e("; wo goes to L2 now, together with wq")
                for n in range(4): e(f" global_load_dwordx4 {vr(vSink+4*n,4)}, v{vt+14}, {sp(sWoP)} offset:{1024*n}")
    wq_loads(0, lnat)
    e(f" s_lshl_b32 s{sT0}, s{sB}, 17")
    e(f" s_lshl_b32 s{sT1}, s{sW}, 15")
    e(f" s_add_u32 s{sT0}, s{sT0}, s{sT1}")
    e(f" s_lshl_b32 s{sT1}, s{sHs}, 8")
    e(f" s_add_u32 s{sT0}, s{sT0}, s{sT1}")
    e(f" v_and_b32 v{vOut}, 0x70, v{vO0}")
    e(f" v_and_b32 v{vt+3}, 16, v{vLane}")
    e(f" v_lshl_or_b32 v{vOut}, v{vt+3}, 3, v{vOut}")
    e(f" v_and_b32 v{vt+3}, 8, v{vLane}")
    e(f" v_lshl_or_b32 v{vOut}, v{vt+3}, 11, v{vOut}")
    e(f" v_add_u32 v{vOut}, s{sT0}, v{vOut}")
    e("; columns 64 (h & 7) + 16 (i & 3) + 8 (w >> 1) + 4 (i >> 2) + 2 (w & 1), +1")
    e(f" s_and_b32 s{sT0}, s{sH}, 7")
    e(f" s_lshl3_add_u32 s{sT0}, s{sB}, s{sT0}          ; 8 b + (h & 7)")
    e(f" s_lshr_b32 s{sT1}, s{sH}, 3")
    e(f" s_and_b32 s{sT2}, s{sHs}, 1")
    e(f" s_lshl1_add_u32 s{sT1}, s{sT1}, s{sT2}         ; i")
    e(f" s_and_b32 s{sT2}, s{sT1}, 3")
    e(f" s_lshl2_add_u32 s{sCol}, s{sT0}, s{sT2}")
    e(f" s_lshr_b32 s{sT2}, s{sW}, 1")
    e(f" s_lshl1_add_u32 s{sCol}, s{sCol}, s{sT2}")
    e(f" s_lshr_b32 s{sT2}, s{sT1}, 2")
    e(f" s_lshl1_add_u32 s{sCol}, s{sCol}, s{sT2}")
    e(f" s_and_b32 s{sT2}, s{sW}, 1")
    e(f" s_lshl1_add_u32 s{sCol}, s{sCol}, s{sT2}")
    e(f" s_lshl_b32 s{sCol}, s{sCol}, 2")
    e(f" s_lshl2_add_u32 s{sT0}, s{sT0}, s{sW}")
    e(f" s_lshl_b32 s{sT0}, s{sT0}, 12")
    e(f" s_lshl_b32 s{sT1}, s{sT1}, 5")
    e(f" s_add_u32 s{sT0}, s{sT0}, s{sT1}")
    e(f" v_lshrrev_b32 v{vPy}, 2, v{vLane}")
    e(f" v_lshlrev_b32 v{vPy}, 8, v{vPy}")
    e(f" v_and_b32 v{vt+3}, 3, v{vLane}")
    e(f" v_lshl_or_b32 v{vPy}, v{vt+3}, 3, v{vPy}")
    e(f" v_add_u32 v{vPy}, s{sT0}, v{vPy}")
    e(f" s_lshl_b32 s{sT1}, s{sB}, 13")
    e(f" s_add_u32 s{sT1}, s{sT1}, {WS_ML}")
    e(f" v_lshlrev_b32 v{vLdsR}, 3, v{vLane}")
    e(f" v_lshl_add_u32 v{vPm}, v{vLane}, 7, s{sT1}")
    e(f" v_mov_b32 v{vt+2}, s{sCol}")
    e(f" v_mov_b32 v{vZero}, 0")
    e(f" global_load_dword v{vXc}, v{vt+2}, {sp(sX)}")
    e(f" global_load_ushort v{vB2}, v{vZero}, {sp(sB2P)}")
    masks(vt + 10)
    e(f" s_mov_b32 s{sLog2e}, {hx(f2u(LOG2E))}")
    e(f" s_lshl_b32 s{sT0}, s{sB}, 6")
    e(f" v_mov_b32 v{vChk}, s{sT0}")
    e(f" s_waitcnt vmcnt({lnat + (2 if fast & 2 else 6)})")
    e(f" s_cmp_lg_u32 s{sW}, 0")
    e(" s_cbranch_scc1 L_nosig")
    e(f" v_mov_b32 v{vt+11}, 1")
    e(" s_mov_b64 exec, 1")
    e(f" global_atomic_add v{vChk}, v{vt+11}, {sp(sDbgP)} sc1")
    e(" s_mov_b64 exec, -1")
    e("L_nosig:")
    e(f" s_lshr_b32 s{sT1}, s2, 3")
    e(f" s_lshl2_add_u32 s{sT1}, s{sT1}, s{sW}")
    e(f" s_cmp_ge_u32 s{sT1}, 2")
    e(" s_cbranch_scc1 L_nowarm")
    e(" s_getpc_b64 s[24:25]")
    e("L_pc:")
    e(f" s_sub_u32 s24, s24, L_pc-{kname}")
    e(" s_subb_u32 s25, s25, 0")
    e(f" s_lshl_b32 s{sT0}, s{sW}, 13")
    e(f" v_lshl_add_u32 v{vt+12}, v{vLane}, 7, s{sT0}")
    e(f" v_min_u32 v{vt+12}, L_codeend-{kname}-4, v{vt+12}")
    e(f" global_load_dword v{vSink+16}, v{vt+12}, s[24:25]")
    e("L_nowarm:")
    e(f" s_cmp_lg_u32 s{sT1}, 7")
    e(" s_cbranch_scc1 L_nompf")
    e(f" v_lshlrev_b32 v{vt+12}, 7, v{vLane}")
    e(f" v_min_u32 v{vt+12}, 2748, v{vt+12}")
    for j, p in enumerate((sW1P, sB1P, sW2P)): e(f" global_load_dword v{vSink+28+j}, v{vt+12}, {sp(p)}")
    e("L_nompf:")
    for j in range(4):
        e(f" v_lshlrev_b32 v{vXf+2*j}, 16, v{vX+j}")
        e(f" v_and_b32 v{vXf+2*j+1}, 0xffff0000, v{vX+j}")
    ln_stats(sM1, sR1)
    e(f" v_lshlrev_b32 v{vPP0}, 16, v{vXo}")
    e(f" v_and_b32 v{vPP1}, 0xffff0000, v{vXo}")
    ln_apply(vPP0, vPP1, sM1, sR1)
    e(f" v_cvt_pk_bf16_f32 v{vPP0}, v{vPP0}, v{vPP0}")
    e(f" v_cvt_pk_bf16_f32 v{vPP1}, v{vPP1}, v{vPP1}")
    wq_loads(lnat, 32)
    def mkG(i):
        for r in range(4):
            e(f" v_and_b32_dpp v{(vA0 if i % 2 == 0 else vA1)+r}, v{vPP0 if i % 2 == 0 else vPP1}, v{vM+r} row_newbcast:{i>>1} {DA}")
    mkG(0); mkG(1)
    for i in range(32):
        if i == 0: e(f" s_waitcnt vmcnt({wqpace})")
        if i >= 32 - wqpace: e(f" s_waitcnt vmcnt({31 - i})")
        e(f" v_mfma_f32_16x16x32_bf16 {vr(vAcc,4)}, {vr(vA0 if i % 2 == 0 else vA1,4)}, {vr(vW+4*i,4)}, {'0' if i == 0 else vr(vAcc,4)}")
        if i + 2 < 32: mkG(i + 2)
    e(" s_nop 7")
    e(f" ds_write_b128 v{vLdsW}, {vr(vAcc,4)} offset:{LDS_Q}")
    e(" s_waitcnt lgkmcnt(0)")
    e(" s_barrier")
    for r, p, n in ((rWo, sWoP, 0x400000), (rW1, sW1P, 2752), (rB1, sB1P, 2752), (rW2, sW2P, 2752)):
        e(f" s_mov_b32 s{r}, s{p}\n s_mov_b32 s{r+1}, s{p+1}\n s_mov_b32 s{r+2}, {hx(n)}\n s_mov_b32 s{r+3}, 0x00020000")
    e(f" s_lshl3_add_u32 s{sT0}, s{sW}, s2")
    e(f" s_cmp_lt_u32 s{sT0}, 8")
    e(f" s_cselect_b32 s{sIsC}, 1, 0")
    slot_thr(sT0x)
    e(f" s_and_b32 s{sT2}, s2, 7")
    e(f" s_lshl_b32 s{sT0}, s{sT2}, 10")
    e(f" s_add_u32 s{sT0}, s{sT0}, {WS_F}")
    e(f" v_lshl_add_u32 v{c0}, v{vLane}, 3, s{sT0}")
    e(f" s_add_u32 s{sT1}, s{sT0}, 512")
    e(f" v_mov_b32 v{c0+1}, s{sT1}")
    e(f" s_mov_b32 s{sT1}, {WS_R}")
    e(f" v_and_b32 v{c0+2}, 7, v{vLane}")
    e(f" v_lshl_add_u32 v{c0+2}, v{c0+2}, 10, s{sT1}")
    e(f" s_add_u32 s{sT0}, s{sT0}, {WS_R - WS_F}")
    e(f" v_mov_b32 v{c0+3}, s{sT0}")
    e(f" s_lshl_b32 s{sMsk}, 1, s{sT2}")
    e(f" s_xor_b32 s{sMsk}, s{sMsk}, 255")
    e(f" s_mov_b32 s{sMsk+1}, 0")
    for j in (6, 7, 8): e(f" v_mov_b32 v{c0+j}, 0")
    e(f" s_mov_b32 s{sNext}, {128 * (PEND - first)}")
    e(f" s_mov_b32 s{sFresh}, 0")
    nstep = [0]
    def step():
        e(f" s_cmp_eq_u32 s{sIsC}, 0")
        e(f" s_cbranch_scc1 L_ns{nstep[0]}")
        e(f" s_call_b64 {sp(sRet)}, L_step")
        e(f"L_ns{nstep[0]}:")
        nstep[0] += 1
    e(f" s_lshl_b32 s{sOff}, s{sH}, 17")
    e(f" s_lshl_b32 s{sT0}, s{sW}, 8")
    e(f" s_add_u32 s{sOff}, s{sOff}, s{sT0}")
    for i in range(32):
        e(f" buffer_load_dwordx4 {vr(vW+4*i,4)}, v{vWo}, {srd(rWo)}, s{sOff} offen offset:{1024*(i&3)}")
        if i & 3 == 3: e(f" s_add_u32 s{sOff}, s{sOff}, 4096")
        step()
        e(" s_waitcnt vmcnt(0)")
    for j in range(4): ln_apply(vXf + 2*j, vXf + 2*j + 1, sM1, sR1)
    e(f" v_lshlrev_b32 v{vXa}, 16, v{vXc}")
    e(f" v_and_b32 v{vXb}, 0xffff0000, v{vXc}")
    e(f" v_mov_b32 v{vHa}, v{vXa}")
    e(f" v_mov_b32 v{vHb}, v{vXb}")
    ln_apply(vHa, vHb, sM1, sR1)
    ln_stats(sT2, sT3)
    ln_apply(vHa, vHb, sT2, sT3)
    e(f" s_mov_b32 s{sC3}, {hx(f2u(C3))}")
    e(f" v_mov_b32 v{vXf+7}, {hx(f2u(C1))}")
    e(f" v_mov_b32 v{vBa}, 0")
    e(f" v_mov_b32 v{vBb}, 0")
    e(f" v_lshlrev_b32 v{vXf}, 2, v{vLane}")
    e(f" s_mov_b32 s{sT0}, 11")
    e("L_mlp:")
    e(f" buffer_load_dword v{vXf+1}, v{vXf}, {srd(rW1)}, 0 offen")
    e(f" buffer_load_dword v{vXf+3}, v{vXf}, {srd(rB1)}, 0 offen")
    e(f" buffer_load_dword v{vXf+5}, v{vXf}, {srd(rW2)}, 0 offen")
    e(f" v_add_u32 v{vXf}, 256, v{vXf}")
    step()
    e(" s_waitcnt vmcnt(0)")
    e(f" v_and_b32 v{vXf+2}, 0xffff0000, v{vXf+1}")
    e(f" v_lshlrev_b32 v{vXf+1}, 16, v{vXf+1}")
    e(f" v_and_b32 v{vXf+4}, 0xffff0000, v{vXf+3}")
    e(f" v_lshlrev_b32 v{vXf+3}, 16, v{vXf+3}")
    u = [vt, vt+1, vt+2, vt+3]; z = [vt+4, vt+5, vt+6, vt+7]; hs = [vHa, vHa, vHb, vHb]
    for k in range(4): e(f" v_mul_f32 v{u[k]}, v{hs[k]}, v{vXf+1+(k&1)}")
    rnd2(u[0], u[1], vt+8); rnd2(u[2], u[3], vt+9)
    for k in range(4): e(f" v_add_f32 v{u[k]}, v{u[k]}, v{vXf+3+(k&1)}")
    rnd2(u[0], u[1], vt+8); rnd2(u[2], u[3], vt+9)
    for k in range(4): e(f" v_mul_f32 v{z[k]}, v{u[k]}, v{u[k]}")
    for k in range(4): e(f" v_fma_f32 v{z[k]}, v{z[k]}, s{sC3}, v{vXf+7}")
    for k in range(4): e(f" v_mul_f32 v{z[k]}, v{z[k]}, v{u[k]}")
    for k in range(4): e(f" v_exp_f32 v{z[k]}, v{z[k]}")
    e(" s_nop 0")
    for k in range(4): e(f" v_add_f32 v{z[k]}, 1.0, v{z[k]}")
    for k in range(4): e(f" v_rcp_f32 v{z[k]}, v{z[k]}")
    e(" s_nop 0")
    for k in range(4): e(f" v_mul_f32 v{u[k]}, v{u[k]}, v{z[k]}")
    e(f" v_cvt_pk_bf16_f32 v{vt+8}, v{u[0]}, v{u[1]}")
    e(f" v_cvt_pk_bf16_f32 v{vt+9}, v{u[2]}, v{u[3]}")
    e(f" v_dot2_f32_bf16 v{vBa}, v{vt+8}, v{vXf+5}, v{vBa}")
    e(f" v_dot2_f32_bf16 v{vBb}, v{vt+9}, v{vXf+5}, v{vBb}")
    e(f" s_sub_u32 s{sT0}, s{sT0}, 1")
    e(f" s_cmp_lg_u32 s{sT0}, 0")
    e(" s_cbranch_scc1 L_mlp")
    e(" s_nop 1")
    wave_reduce("v_add_f32", [vBa, vBb])
    rnd2(vBa, vBb, vT)
    e(f" v_lshlrev_b32 v{vB2}, 16, v{vB2}")
    e(f" v_add_f32 v{vBa}, v{vBa}, v{vB2}")
    e(f" v_add_f32 v{vBb}, v{vBb}, v{vB2}")
    rnd2(vBa, vBb, vT)
    e(f" s_mov_b32 s{sT0}, 0x05040100")
    e(f" s_mov_b32 s{sT1}, 0x07060302")
    for t in range(4):
        for a in range(4):
            for q in range(4):
                lo, hi = vW + 4*(8*t+2*a) + q, vW + 4*(8*t+2*a+1) + q
                e(f" v_perm_b32 v{vWT+32*t+8*q+a}, v{hi}, v{lo}, s{sT0}")
                e(f" v_perm_b32 v{vWT+32*t+8*q+4+a}, v{hi}, v{lo}, s{sT1}")
    e(f" v_and_b32 v{vt+3}, 60, v{vLane}")
    e(f" ds_write_b32 v{vt+3}, v{vZero} offset:{LDS_Z}")
    e(f" v_and_b32 v{vt}, 3, v{vLane}")
    e(f" v_mul_u32_u24 v{vt}, {OROW}, v{vt}")
    e(f" v_and_b32 v{vt+1}, 48, v{vLane}")
    e(f" v_lshl_add_u32 v{vt}, v{vt+1}, 2, v{vt}")
    e(f" v_add_u32 v{vt}, {LDS_O}, v{vt}")
    e(f" v_mov_b32 v{vt+2}, {LDS_Z}")
    e(f" v_and_b32 v{vt+1}, 12, v{vLane}")
    for val, dst in ((0, vAl), (4, vAh)):
        e(f" v_cmp_eq_u32 vcc, {val}, v{vt+1}")
        e(" s_nop 1")
        e(f" v_cndmask_b32 v{dst}, v{vt+2}, v{vt}, vcc")
    if one:
        e("; wave 4 finishes all eight columns: it gets (mlp, x) of the four pairs through LDS")
        e(f" s_lshl_b32 s{sT0}, s{sW}, 4")
        e(f" v_mov_b32 v{vt}, s{sT0}")
        e(" s_mov_b32 exec_lo, 0\n s_mov_b32 exec_hi, 0x80000000")
        e(f" ds_write_b128 v{vt}, {vr(vBa,4)} offset:{LDS_XB}")
        e(" s_mov_b64 exec, -1")
        e(f" v_and_b32 v{vSw}, 60, v{vLane}")
        e(f" v_and_b32 v{vSw+1}, 3, v{vLane}")
        e(f" v_lshlrev_b32 v{vSw+1}, 4, v{vSw+1}")
        e(f" v_and_b32 v{vSw+2}, 2, v{vLane}")
        e(f" v_lshl_add_u32 v{vSw+2}, v{vSw+2}, 3, s{sCol}")
        e(f" v_and_b32 v{vSw+3}, 1, v{vLane}")
        e(f" v_lshl_add_u32 v{vSw+2}, v{vSw+3}, 2, v{vSw+2}")
        e(f" v_add_u32 v{vPy}, 4096, v{vPy}")
        e(f" v_add_u32 v{vSw+3}, 8192, v{vPy}")
    else:
        e(f" v_lshrrev_b32 v{vSw}, 2, v{vLane}")
        e(f" s_lshl_b32 s{sT0}, s{sW}, 7")
        e(f" v_lshl_add_u32 v{vSw}, v{vSw}, 3, s{sT0}")
        e(f" v_xor_b32 v{vSw+1}, 8, v{vSw}")
        e(f" v_and_b32 v{vSw+2}, 3, v{vLane}")
        e(f" v_lshlrev_b32 v{vSw+2}, 7, v{vSw+2}")
        e(f" v_lshrrev_b32 v{vSw+3}, 4, v{vLane}")
        e(f" v_lshl_add_u32 v{vSw+2}, v{vSw+3}, 3, v{vSw+2}")
        e(f" s_lshl_b32 s{sT1}, s{sW}, 5")
        e(f" v_add_u32 v{vSw+2}, s{sT1}, v{vSw+2}")
        e(f" v_and_b32 v{vSw+3}, 15, v{vLane}")
        e(f" v_lshl_add_u32 v{vSw+3}, v{vSw+3}, 3, s{sT0}")
    e(f" s_mov_b32 s{sSpin}, {SPIN}")
    e("L_chk:")
    e(f" global_load_dword v{vt}, v{vChk}, {sp(sDbgP)} sc1")
    e(" s_waitcnt vmcnt(0)")
    e(f" v_readfirstlane_b32 s{sT0}, v{vt}")
    e(f" s_cmp_ge_u32 s{sT0}, 64")
    e(" s_cbranch_scc1 L_chkd")
    e(f" s_sub_u32 s{sSpin}, s{sSpin}, 1")
    e(f" s_cmp_lg_u32 s{sSpin}, 0")
    e(" s_cbranch_scc1 L_chk")
    e("L_chkd:")
    e(f" s_cmp_eq_u32 s{sIsC}, 0")
    e(" s_cbranch_scc1 L_ctld")
    e(f" s_mov_b32 s{sSpin}, 256")
    e("L_ctl:")
    e(f" s_call_b64 {sp(sRet)}, L_step")
    e(f" s_cmp_ge_u32 s{sOwn}, {PEND - 4}")
    e(" s_cbranch_scc1 L_ctld")
    e(f" s_sub_u32 s{sSpin}, s{sSpin}, 1")
    e(f" s_cmp_lg_u32 s{sSpin}, 0")
    e(" s_cbranch_scc1 L_ctl")
    e("L_ctld:")
    e(" s_waitcnt vmcnt(0) lgkmcnt(0)")
    e(" s_barrier")
    e(f" ds_read_b128 {vr(vt,4)}, v{vZero} offset:{LDS_ML}")
    e(f" ds_read_b128 {vr(vt+4,4)}, v{vZero} offset:{LDS_ML+16}")
    if one: e(f" ds_read_b128 {vr(vBa,4)}, v{vSw+1} offset:{LDS_XB}")
    e(" s_waitcnt lgkmcnt(0)")
    e(f" v_max3_f32 v{vt+8}, v{vt}, v{vt+2}, v{vt+4}")
    e(f" v_max_f32 v{vt+8}, v{vt+8}, v{vt+6}")
    for w in range(4): e(f" v_sub_f32 v{vt+2*w}, v{vt+2*w}, v{vt+8}")
    for w in range(4): e(f" v_mul_f32 v{vt+2*w}, s{sLog2e}, v{vt+2*w}")
    for w in range(4): e(f" v_exp_f32 v{vt+2*w}, v{vt+2*w}")
    e(f" v_mul_f32 v{vt+9}, v{vt}, v{vt+1}")
    for w in range(1, 4): e(f" v_fmac_f32 v{vt+9}, v{vt+2*w}, v{vt+2*w+1}")
    e(f" v_rcp_f32 v{vt+10}, v{vt+9}")
    e(f" v_and_b32 v{vMo}, -2, v{vt+8}")
    e(f" v_and_b32 v{vMo+1}, -2, v{vt+9}")
    e(f" s_cmp_lg_u32 s{sW}, 0")
    e(" s_cbranch_scc1 L_noml")
    e(" s_mov_b64 exec, 1")
    e(f" global_store_dwordx2 v{vMo+2}, {vr(vMo,2)}, {sp(sWs)} sc1")
    e(" s_mov_b64 exec, -1")
    e("L_noml:")
    for w in range(4): e(f" v_mul_f32 v{vG+w}, v{vt+2*w}, v{vt+10}")
    e(f" s_mov_b32 s{sSpin}, {SPIN}")
    e(" s_barrier")
    for t in range(4): e(f" ds_read_b128 {vr(vAop+4*t,4)}, v{vAl} offset:{16*t}")
    for t in range(4): e(f" ds_read_b128 {vr(vAop+16+4*t,4)}, v{vAh} offset:{16*t}")
    e(" s_cbranch_scc1 L_np0")
    e(f" global_load_dwordx2 {vr(vMl,2)}, v{vPm}, {sp(sWs)} sc1")
    e("L_np0:")
    for t in range(4):
        e(f" s_waitcnt lgkmcnt({7-t})")
        for j in range(4):
            e(f" v_mfma_f32_16x16x32_bf16 {vr(vY+4*j,4)}, {vr(vAop+4*t,4)}, {vr(vWT+32*t+4*j,4)}, {'0' if t == 0 else vr(vY+4*j,4)}")
    e(" s_waitcnt lgkmcnt(0)")
    def fin(j):
        e(f" v_mul_f32 v{vAcc+j}, v{vG}, v{vY+4*j}")
        for i in range(1, 4): e(f" v_fmac_f32 v{vAcc+j}, v{vG+i}, v{vY+4*j+i}")
        e(f" v_and_b32 v{vAcc+j}, -2, v{vAcc+j}")
    for j in range(4):
        for t in range(4):
            e(f" v_mfma_f32_16x16x32_bf16 {vr(vY+4*j,4)}, {vr(vAop+16+4*t,4)}, {vr(vWT+32*t+4*(j+4),4)}, {vr(vY+4*j,4)}")
            if j == 3 and t < 2: fin(t)
    fin(2)
    e(" s_nop 2")
    fin(3)
    e(" s_mov_b32 exec_hi, 0")
    e(f" global_store_dwordx4 v{vOut}, {vr(vAcc,4)}, {sp(sWs)} sc1")
    e(" s_mov_b64 exec, -1")
    e(f" s_cbranch_scc1 {'L_end' if one else 'L_np1'}")
    e(" s_waitcnt vmcnt(1)")
    e("L_poll1:")
    e(f" v_max_u32 v{vt+4}, v{vMl}, v{vMl+1}")
    e(f" v_cmp_eq_u32 vcc, -1, v{vt+4}")
    e(" s_cbranch_vccz L_got1")
    e(f" s_sub_u32 s{sSpin}, s{sSpin}, 1")
    e(f" s_cmp_eq_u32 s{sSpin}, 0")
    e(" s_cbranch_scc1 L_got1")
    e(" s_mov_b64 exec, vcc")
    if sleep1: e(f" s_sleep {sleep1}")
    e(f" global_load_dwordx2 {vr(vMl,2)}, v{vPm}, {sp(sWs)} sc1")
    e(" s_waitcnt vmcnt(0)")
    e(" s_branch L_poll1")
    e("L_got1:")
    e(" s_mov_b64 exec, -1")
    if one:
        vY4 = 240; vW4 = 248
        def ysweep():
            for i in range(4):
                e(f" global_load_dwordx2 {vr(vY4+2*i,2)}, v{vPy if i < 2 else vSw+3}, {sp(sWs)} offset:{-4096 if i % 2 == 0 else 0} sc1")
        ysweep()
        e(f" v_sub_f32_dpp v{vWt}, v{vMl}, v{vMl} quad_perm:[1,0,3,2] {DA}")
        e(f" v_mov_b32_dpp v{vWt+1}, v{vMl+1} quad_perm:[1,0,3,2] {DA}")
        e(f" v_mul_f32 v{vWt}, s{sLog2e}, v{vWt}")
        e(f" v_exp_f32 v{vWt}, v{vWt}")
        e(f" s_mov_b32 s{sSpin}, {SPIN}")
        e(f" v_fma_f32 v{vWt}, v{vWt}, v{vWt+1}, v{vMl+1}")
        e(f" v_rcp_f32 v{vWt}, v{vWt}")
        e(" s_nop 0")
        e(f" v_mul_f32 v{vWt}, v{vWt}, v{vMl+1}")
        for i in range(4): e(f" ds_bpermute_b32 v{vW4+i}, v{vSw}, v{vWt} offset:{64*i}")
        e("L_poll:")
        e(" s_waitcnt vmcnt(0)")
        e(f" v_max3_u32 v{vt+4}, v{vY4}, v{vY4+1}, v{vY4+2}")
        e(f" v_max3_u32 v{vt+5}, v{vY4+3}, v{vY4+4}, v{vY4+5}")
        e(f" v_max3_u32 v{vt+4}, v{vY4+6}, v{vY4+7}, v{vt+4}")
        e(f" v_max_u32 v{vt+4}, v{vt+4}, v{vt+5}")
        e(f" v_cmp_eq_u32 vcc, -1, v{vt+4}")
        e(" s_cbranch_vccz L_got")
        e(f" s_sub_u32 s{sSpin}, s{sSpin}, 1")
        e(f" s_cmp_eq_u32 s{sSpin}, 0")
        e(" s_cbranch_scc1 L_got")
        e(" s_mov_b64 exec, vcc")
        ysweep()
        e(" s_branch L_poll")
        e("L_got:")
        e(" s_mov_b64 exec, -1")
        e(" s_waitcnt lgkmcnt(0)")
        e(f" v_mul_f32 v{vt}, v{vY4}, v{vW4}")
        e(f" v_mul_f32 v{vt+1}, v{vY4+1}, v{vW4}")
        for i in range(1, 4):
            e(f" v_fmac_f32 v{vt}, v{vY4+2*i}, v{vW4+i}")
            e(f" v_fmac_f32 v{vt+1}, v{vY4+2*i+1}, v{vW4+i}")
        for st in ("row_ror:8", "row_ror:4"):
            e(" s_nop 0")
            for r in (vt, vt+1): e(f" v_add_f32_dpp v{r}, v{r}, v{r} {st} {DA}")
        for op in ("v_permlane16_swap_b32", "v_permlane32_swap_b32"):
            e(f" v_mov_b32 v{vt+2}, v{vt}")
            e(f" v_mov_b32 v{vt+3}, v{vt+1}")
            e(" s_nop 0")
            e(f" {op} v{vt}, v{vt+2}")
            e(f" {op} v{vt+1}, v{vt+3}")
            e(" s_nop 0")
            e(f" v_add_f32 v{vt}, v{vt}, v{vt+2}")
            e(f" v_add_f32 v{vt+1}, v{vt+1}, v{vt+3}")
    else:
        e(f" ds_write_b64 v{vLdsR}, {vr(vMl,2)} offset:{LDS_Q}")
        e(" s_waitcnt lgkmcnt(0)")
        e("L_np1:")
        e(" s_barrier")
        e(f" global_load_dwordx2 {vr(vYs,2)}, v{vPy}, {sp(sWs)} sc1")
        e(f" ds_read_b64 {vr(vMl,2)}, v{vSw} offset:{LDS_Q}")
        e(f" ds_read_b64 {vr(vWt,2)}, v{vSw+1} offset:{LDS_Q}")
        e(" s_waitcnt lgkmcnt(0)")
        e(f" v_sub_f32 v{vWt}, v{vWt}, v{vMl}")
        e(f" v_mul_f32 v{vWt}, s{sLog2e}, v{vWt}")
        e(f" v_exp_f32 v{vWt}, v{vWt}")
        e(f" s_mov_b32 s{sSpin}, {SPIN}")
        e(f" v_fma_f32 v{vWt}, v{vWt}, v{vWt+1}, v{vMl+1}")
        e(f" v_rcp_f32 v{vWt}, v{vWt}")
        e(f" v_mov_b32 v{vt+2}, s{sCol}")
        e(f" v_mul_f32 v{vWt}, v{vWt}, v{vMl+1}")
        e("L_poll:")
        e(" s_waitcnt vmcnt(0)")
        e(f" v_max_u32 v{vt+4}, v{vYs}, v{vYs+1}")
        e(f" v_cmp_eq_u32 vcc, -1, v{vt+4}")
        e(" s_cbranch_vccz L_got")
        e(f" s_sub_u32 s{sSpin}, s{sSpin}, 1")
        e(f" s_cmp_eq_u32 s{sSpin}, 0")
        e(" s_cbranch_scc1 L_got")
        e(" s_mov_b64 exec, vcc")
        e(f" global_load_dwordx2 {vr(vYs,2)}, v{vPy}, {sp(sWs)} sc1")
        e(" s_branch L_poll")
        e("L_got:")
        e(" s_mov_b64 exec, -1")
        e(f" v_mul_f32 v{vt}, v{vYs}, v{vWt}")
        e(f" v_mul_f32 v{vt+1}, v{vYs+1}, v{vWt}")
        for st in ("row_ror:8", "row_ror:4"):
            e(" s_nop 0")
            for r in (vt, vt+1): e(f" v_add_f32_dpp v{r}, v{r}, v{r} {st} {DA}")
        e(f" ds_write_b64 v{vSw+2}, {vr(vt,2)} offset:{LDS_Q+512}")
        e(" s_waitcnt lgkmcnt(0)")
        e(" s_barrier")
        e(f" ds_read_b64 {vr(vt,2)}, v{vSw+3} offset:{LDS_Q+512}")
        e(" s_waitcnt lgkmcnt(0)")
        for k, st in enumerate(("quad_perm:[1,0,3,2]", "quad_perm:[2,3,0,1]", "row_half_mirror", "row_mirror")):
            e(" s_nop 0")
            for r in (vt, vt+1): e(f" v_add_f32_dpp v{r}, v{r}, v{r} {st} {DA}")
    rnd2(vt, vt+1, vT)
    e(f" v_add_f32 v{vt}, v{vt}, v{vXa}")
    e(f" v_add_f32 v{vt+1}, v{vt+1}, v{vXb}")
    rnd2(vt, vt+1, vT)
    e(f" v_add_f32 v{vt}, v{vt}, v{vBa}")
    e(f" v_add_f32 v{vt+1}, v{vt+1}, v{vBb}")
    e(f" v_cvt_pk_bf16_f32 v{vt}, v{vt}, v{vt+1}")
    if one:
        e(" s_mov_b64 exec, 15")
        e(f" global_store_dword v{vSw+2}, v{vt}, {sp(sOutP)}")
    else:
        e(" s_mov_b32 exec_lo, 0\n s_mov_b32 exec_hi, 0x80000000")
        e(f" global_store_dword v{vt+2}, v{vt}, {sp(sOutP)}")
    if stamps:
        e(" s_memrealtime s[88:89]")
        e(f" s_lshl2_add_u32 s{sT0}, s2, s{sW}")
        e(f" s_lshl_b32 s{sT0}, s{sT0}, 3")
        e(f" s_add_u32 s{sT0}, s{sT0}, 0x1000000")
        if one:
            e(f" v_and_b32 v{vt+6}, 3, v{vLane}")
            e(f" v_lshl_add_u32 v{vt+6}, v{vt+6}, 3, s{sT0}")
        else: e(f" v_mov_b32 v{vt+6}, s{sT0}")
        e(" s_waitcnt lgkmcnt(0)")
        e(f" v_mov_b32 v{vt+4}, s86\n v_mov_b32 v{vt+5}, s88")
        e(f" global_store_dwordx2 v{vt+6}, {vr(vt+4,2)}, {sp(sWs)}")
    e("L_end:\n s_endpgm")

    e("L_step:")
    e(f" global_load_dwordx2 {vr(c0+4,2)}, v{c0}, {sp(sWs)} nt")
    e(f" s_mov_b64 exec, {sp(sMsk)}")
    e(f" global_load_dword v{c0+6}, v{c0+2}, {sp(sWs)} sc1")
    e(" s_mov_b64 exec, -1")
    e(" s_waitcnt vmcnt(0)")
    e(f" v_readfirstlane_b32 s{sOwn}, v{c0+4}")
    e(f" v_add_u32 v{c0+4}, v{c0+4}, v{c0+5}")
    e(f" v_cmp_ne_u32 vcc, v{c0+6}, v{c0+7}")
    wave_reduce("v_add_u32", [c0+4])
    e(f" v_mov_b32 v{c0+7}, v{c0+6}")
    e(f" v_readlane_b32 s{sNow}, v{c0+4}, 63")
    e(f" s_or_b32 s{sFresh}, s{sFresh}, vcc_lo")
    e(" s_nop 0")
    e(f" v_sub_u32 v{c0+9}, s{sNow}, v{c0+6}")
    e(f" v_cndmask_b32 v{c0+8}, v{c0+8}, v{c0+9}, vcc")
    e(f" s_cmp_lt_u32 s{sNow}, s{sNext}")
    e(" s_cbranch_scc1 L_stepp")
    e(f" s_add_u32 s{sNext}, s{sNext}, {128 * cstep}")
    e(f" s_cmp_gt_u32 s{sNext}, {128 * (PEND - last)}")
    e(f" s_cselect_b32 s{sNext}, -1, s{sNext}")
    e(f" v_mov_b32 v{c0+10}, s{sNow}")
    e(" s_mov_b64 exec, 1")
    e(f" global_store_dword v{c0+3}, v{c0+10}, {sp(sWs)} sc1")
    e(" s_mov_b64 exec, -1")
    e("L_stepp:")
    e(f" s_cmp_lg_u32 s{sFresh}, s{sMsk}")
    e(" s_cbranch_scc1 L_stepd")
    e(f" v_mov_b32 v{c0+9}, v{c0+8}")
    for st in ("quad_perm:[1,0,3,2]", "quad_perm:[2,3,0,1]", "row_half_mirror"):
        e(" s_nop 1")
        e(f" v_add_u32_dpp v{c0+9}, v{c0+9}, v{c0+9} {st} {DA}")
    e(f" v_subrev_u32 v{c0+9}, {7 * bias}, v{c0+9}")
    e(f" s_sub_i32 s{sFresh}, {PEND - 2}, s{sOwn}")
    e(f" s_min_i32 s{sFresh}, s{sFresh}, {hor}")
    e(f" s_max_i32 s{sFresh}, s{sFresh}, 3")
    e(f" v_cvt_f32_i32 v{c0+9}, v{c0+9}")
    e(f" v_cvt_f32_u32 v{c0+11}, s{sFresh}")
    e(f" v_rcp_f32 v{c0+11}, v{c0+11}")
    e(f" v_mul_f32 v{c0+9}, {hx(f2u(gain / 8))}, v{c0+9}")
    e(f" v_mul_f32 v{c0+9}, v{c0+9}, v{c0+11}")
    e(f" v_cvt_i32_f32 v{c0+9}, v{c0+9}")
    e(f" v_add_u32 v{c0+9}, s{sT0x}, v{c0+9}")
    e(f" v_max_i32 v{c0+9}, {tlo}, v{c0+9}")
    e(f" v_min_i32 v{c0+9}, {thi}, v{c0+9}")
    e(" s_mov_b64 exec, 1")
    e(f" global_store_dword v{c0+1}, v{c0+9}, {sp(sWs)}")
    e(" s_mov_b64 exec, -1")
    e(f" s_mov_b32 s{sFresh}, 0")
    e("L_stepd:")
    e(f" s_setpc_b64 {sp(sRet)}")
    e("L_codeend:")
    e(f'.section .rodata,"a"\n.p2align 6\n.amdhsa_kernel {kname}')
    e("  .amdhsa_next_free_vgpr 256\n  .amdhsa_next_free_sgpr 102\n  .amdhsa_accum_offset 256")
    e("  .amdhsa_group_segment_fixed_size 0\n  .amdhsa_kernarg_size 104\n  .amdhsa_user_sgpr_count 2")
    e("  .amdhsa_user_sgpr_kernarg_segment_ptr 1\n  .amdhsa_system_sgpr_workgroup_id_x 1")
    e("  .amdhsa_float_denorm_mode_32 3")
    e(".end_amdhsa_kernel")
    return "\n".join(L) + "\n"

if __name__ == "__main__":
    if sys.argv[1].endswith(".json"):
        for name, kw in json.load(open(sys.argv[1])).items():
            open(f"k/{name}.s", "w").write(gen(**kw))
    else:
        kw = json.loads(sys.argv[2]) if len(sys.argv) > 2 else {}
        open(sys.argv[1], "w").write(gen(**kw))
```
